```python
import torch

def _softmax(x, axis=-1):
    return torch.softmax(x, dim=axis)

def _gelu(x):
    return torch.nn.functional.gelu(x, approximate='tanh')

def _silu(x):
    return torch.nn.functional.silu(x)

def _sigmoid(x):
    return torch.sigmoid(x)

def _layernorm(x, axis=-1, eps=1e-05):
    m = x.mean(dim=axis, keepdim=True)
    v = x.var(dim=axis, keepdim=True, unbiased=False)
    return (x - m) / torch.sqrt(v + eps)

def _scatter_add(tgt, idx, src, axis=0):
    return tgt.clone().index_add_(axis, idx, src)

def _segment_sum(src, seg, n):
    out = torch.zeros((n,) + src.shape[1:], dtype=src.dtype)
    return out.index_add_(0, seg, src)

def _pad(x, pw):
    flat = tuple((v for pair in reversed(pw) for v in pair))
    return torch.nn.functional.pad(x, flat)
kernel_name = 'adaLN_cond__memory_aug_recurrent_mem_tr__dense_activation_silu__prompt'

def setup_inputs():

    _w = lambda a: (lambda t: t.to(torch.bfloat16) if t.is_floating_point() else t)(torch.as_tensor(a))

    def _A_setup():
        B, S, Dm = (1, 2048, 512)
        H, Dh = (32, 128)
        M, seg = (8, 32)
        seg = min(seg, S)
        S = S // seg * seg
        return {'x': _w((lambda *s: torch.randn(*s, dtype=torch.bfloat16) * 0.05)(B, S, Dm)), 'mem0': _w((lambda *s: torch.randn(*s, dtype=torch.bfloat16) * 0.8)(B, M, Dm)), 'Wq': _w((lambda *s: torch.randn(*s, dtype=torch.bfloat16) * 0.8)(Dm, H, Dh) * Dm ** (-0.5)), 'Wk': _w((lambda *s: torch.randn(*s, dtype=torch.bfloat16) * 0.8)(Dm, H, Dh) * Dm ** (-0.5)), 'Wv': _w((lambda *s: torch.randn(*s, dtype=torch.bfloat16) * 0.8)(Dm, H, Dh) * Dm ** (-0.5)), 'Wo': _w((lambda *s: torch.randn(*s, dtype=torch.bfloat16) * 0.8)(H, Dh, Dm) * (H * Dh) ** (-0.5)), 'seg_len': seg}
    _A_in = _A_setup()

    def _B_setup():
        B, S, D, F = (1, 2048, 512, 1376)
        return {'x': _w((lambda *s: torch.randn(*s, dtype=torch.bfloat16) * 0.05)(B, S, D)), 'w1': _w((lambda *s: torch.randn(*s, dtype=torch.bfloat16) * 3.2)(D, F) * D ** (-0.5)), 'w2': _w((lambda *s: torch.randn(*s, dtype=torch.bfloat16) * 0.2)(F, D) * F ** (-0.5))}
    _B_in = _B_setup()
    return {'A_x': _A_in['x'], 'A_mem0': _A_in['mem0'], 'A_Wq': _A_in['Wq'], 'A_Wk': _A_in['Wk'], 'A_Wv': _A_in['Wv'], 'A_Wo': _A_in['Wo'], 'A_seg_len': _A_in['seg_len'], 'B_x': _B_in['x'], 'B_w1': _B_in['w1'], 'B_w2': _B_in['w2'], 'c': _w((lambda *s: torch.randn(*s, dtype=torch.bfloat16) * 0.2)(1, 512) * 8.0), 'w_mod': _w((lambda *s: torch.randn(*s, dtype=torch.bfloat16) * 0.2)(512, 6 * 512) * 512 ** (-0.5) * 8.0)}

def reference(A_x, A_mem0, A_Wq, A_Wk, A_Wv, A_Wo, A_seg_len, B_x, B_w1, B_w2, c, w_mod):

    def _A_ref(x, mem0, Wq, Wk, Wv, Wo, seg_len):
        B, S, Dm = x.shape
        H, Dh = (Wq.shape[1], Wq.shape[2])
        M = mem0.shape[1]
        scale = Dh ** (-0.5)
        n_seg = S // seg_len
        L = M + seg_len
        idx = torch.arange(L)
        mask = (idx[:, None] < M) | (idx[:, None] >= idx[None, :])
        mem = mem0
        outs = []
        for s in range(n_seg):
            xs = x[:, s * seg_len:(s + 1) * seg_len, :].clone()
            h = torch.concatenate([mem, xs], axis=1)
            q = torch.einsum('btd,dhe->bhte', h, Wq)
            k = torch.einsum('btd,dhe->bhte', h, Wk)
            v = torch.einsum('btd,dhe->bhte', h, Wv)
            scores = torch.einsum('bhqe,bhke->bhqk', q, k) * scale
            scores = torch.where(mask[None, None], scores, -1000000000.0)
            p = _softmax(scores, axis=-1)
            o = torch.einsum('bhqk,bhke->bhqe', p, v)
            o = torch.einsum('bhte,hed->btd', o, Wo)
            mem = o[:, :M, :].clone()
            outs.append(o[:, M:, :])
        return torch.concatenate(outs, axis=1)

    def _B_ref(x, w1, w2):
        h = torch.einsum('bsd,df->bsf', x, w1)
        h = _silu(h)
        out = torch.einsum('bsf,fd->bsd', h, w2)
        return out
    x = A_x
    mod = (_silu(c) @ w_mod).reshape(c.shape[0], 6, 1, -1)
    sa, ca, ga, sb, cb, gb = (mod[:, 0].clone(), mod[:, 1].clone(), mod[:, 2].clone(), mod[:, 3].clone(), mod[:, 4].clone(), mod[:, 5].clone())
    h = _layernorm(x, axis=-1) * (1 + ca) + sa
    x = x + ga * _A_ref(h, A_mem0, A_Wq, A_Wk, A_Wv, A_Wo, A_seg_len)
    h = _layernorm(x, axis=-1) * (1 + cb) + sb
    x = x + gb * _B_ref(h, B_w1, B_w2)
    return x
```

```python
import re

TRANS = ('v_exp_f32','v_log_f32','v_rcp_f32','v_rsq_f32','v_sqrt_f32','v_sin_f32','v_cos_f32')

def regs_of(tok):
    tok = tok.strip()
    if tok.startswith('-'): tok = tok[1:]
    if tok.startswith('|') and tok.endswith('|'): tok = tok[1:-1]
    m = re.fullmatch(r'([vas])(\d+)', tok)
    if m: return {m.group(1)+m.group(2)}
    m = re.fullmatch(r'([vas])\[(\d+):(\d+)\]', tok)
    if m: return {m.group(1)+str(i) for i in range(int(m.group(2)), int(m.group(3))+1)}
    if tok in ('vcc','vcc_lo','vcc_hi'): return {'vcc'}
    if tok in ('exec','exec_lo','exec_hi'): return {'exec'}
    if tok == 'm0': return {'m0'}
    return set()

class Ins:
    def __init__(self, text):
        self.text = text
        t = text.split(';')[0].strip()
        self.label = None; self.op = None
        if not t or t.startswith('.'):
            self.kind = 'none'; return
        if t.endswith(':'):
            self.label = t[:-1]; self.kind = 'label'; return
        parts = t.split(None, 1)
        op = parts[0]; self.op = op
        rest = parts[1] if len(parts) > 1 else ''
        rest = re.sub(r':\[[^\]]*\]', lambda m: m.group(0).replace(',', '/'), rest)
        rest = re.sub(r'hwreg\([^)]*\)', 'hwreg', rest)
        ops = [o.strip() for o in rest.split(',')] if rest else []
        mods = ''
        if ops:
            last = ops[-1].split(None, 1)
            ops[-1] = last[0]
            mods = last[1] if len(last) > 1 else ''
        self.ops = ops; self.mods = mods
        R = [regs_of(o) for o in ops]
        self.defs = set(); self.uses = set()
        self.mfma = None; self.dpp = False; self.srcab = set(); self.srcc = set()
        self.store_data = set(); self.wide = False; self.lds_dma = False
        base = re.sub(r'_(e32|e64|dpp|sdwa)$', '', op)
        self.base = base
        if op.startswith('v_mfma') or op.startswith('v_smfmac'):
            self.kind = 'mfma'
            self.passes = 8 if '32x32' in op else (2 if '4x4' in op else 4)
            self.defs = set(R[0])
            if op.startswith('v_smfmac'):
                self.srcab = R[1] | R[2] | R[3]; self.srcc = set(R[0]); self.idx = R[3]
            else:
                self.srcab = R[1] | R[2]; self.srcc = set(R[3]); self.idx = set()
            self.uses = self.srcab | self.srcc
        elif op.startswith('v_'):
            self.kind = 'valu'
            self.dpp = op.endswith('_dpp') or any(k in mods for k in ('quad_perm','row_','wave_'))
            if base.startswith('v_permlane') and 'swap' in base:
                self.defs = R[0] | R[1]; self.uses = R[0] | R[1]
            elif base.startswith('v_cmpx'):
                self.defs = {'exec'} | R[0]; self.uses = set().union(*R[1:])
            elif base in ('v_nop',):
                pass
            else:
                self.defs = set(R[0]); rest_r = R[1:]
                if '_co_' in base or base.startswith('v_div_scale'):
                    self.defs |= R[1]; rest_r = R[2:]
                self.uses = set().union(*rest_r) if rest_r else set()
                if base in ('v_fmac_f32','v_mac_f32','v_writelane_b32','v_pk_fmac_f16','v_dot2c_f32_bf16') or self.dpp:
                    self.uses |= R[0]
                if base == 'v_cndmask_b32' and len(ops) == 3: self.uses.add('vcc')
        elif op.startswith('buffer_') or op.startswith('global_'):
            self.kind = 'vmem'
            allr = set().union(*R) if R else set()
            if op in ('buffer_wbl2','buffer_inv'):
                pass
            elif '_load_' in op:
                if re.search(r'\blds\b', mods) or '_lds_' in op:
                    self.lds_dma = True; self.uses = allr | {'m0'}
                else:
                    self.defs = set(R[0]); self.uses = set().union(*R[1:])
            elif '_atomic_' in op:
                self.uses = allr
                if 'sc0' in mods: self.defs = set(R[0])
                self.store_data = set(R[0])
            else:
                self.uses = allr
                self.store_data = set(R[0] if op.startswith('buffer_') else R[1])
                self.wide = op.endswith('x3') or op.endswith('x4')
        elif op.startswith('ds_'):
            self.kind = 'ds'
            if 'read' in op or 'permute' in op or 'swizzle' in op or '_rtn' in op:
                self.defs = set(R[0]); self.uses = set().union(*R[1:])
            else:
                self.uses = set().union(*R)
        elif op.startswith('s_'):
            self.kind = 'salu'
            if op.startswith('s_load') or op in ('s_memtime','s_memrealtime'):
                self.kind = 'smem'; self.defs = set(R[0]); self.uses = set().union(*R[1:]) if len(R) > 1 else set()
            elif op.startswith('s_cmp') or op.startswith('s_bitcmp'):
                self.uses = set().union(*R)
            elif op.startswith('s_cbranch') or op == 's_branch':
                self.kind = 'branch'; self.target = ops[0]
            elif op in ('s_nop','s_waitcnt','s_barrier','s_endpgm','s_sleep','s_setprio'):
                pass
            else:
                self.defs = set(R[0]) if R else set(); self.uses = set().union(*R[1:]) if len(R) > 1 else set()
                if 'saveexec' in op: self.defs.add('exec')
        else:
            raise ValueError('unknown op ' + text)
    def states(self):
        if self.kind in ('none','label'): return 0
        if self.op == 's_nop': return int(self.ops[0], 0) + 1
        if self.kind == 'mfma': return 2
        return 1

def isvec(r): return r[0] in 'va' and r not in ('vcc',)
def vecs(s): return {r for r in s if isvec(r)}
def scal(s): return {r for r in s if not isvec(r)}

def need(p, c):
    n = 0
    if p.kind == 'valu':
        vd = vecs(p.defs); sd = scal(p.defs)
        if c.kind == 'mfma':
            if vd & c.uses: n = max(n, 2)
            if 'exec' in sd: n = max(n, 4)
        if c.kind == 'valu':
            if p.base in TRANS and c.base not in TRANS and vd & c.uses: n = max(n, 1)
            if c.base in ('v_readlane_b32','v_readfirstlane_b32') and vd & c.uses: n = max(n, 1)
            if c.dpp and vd & c.uses: n = max(n, 2)
            if c.dpp and 'exec' in sd: n = max(n, 5)
            if c.base.startswith('v_permlane'):
                if vd & c.uses: n = max(n, 2)
                if 'exec' in sd: n = max(n, 4)
            if (sd - {'exec'}) & c.uses:
                n = max(n, 4 if c.base in ('v_readlane_b32','v_writelane_b32') else 2)
            if 'exec' in sd and ('exec' in c.uses): n = max(n, 2)
            if 'exec' in sd and c.base in ('v_readlane_b32','v_readfirstlane_b32','v_writelane_b32'): n = max(n, 4)
            if ('op_sel' in p.mods or 'sdwa' in p.op or 'dst_sel' in p.mods) and vd & (c.uses | c.defs): n = max(n, 1)
        if c.kind == 'vmem' and sd & c.uses: n = max(n, 5)
    if p.kind == 'mfma':
        ps = p.passes
        full = {2:5,4:8,8:12}[ps]; part = {2:4,4:6,8:10}[ps]; war = {2:1,4:3,8:7}[ps]
        if c.kind == 'mfma':
            if p.defs & c.srcab: n = max(n, full)
            if p.defs & c.srcc:
                if not (p.defs == c.srcc and p.passes == c.passes): n = max(n, part)
                elif ps == 2: n = max(n, 2)
            elif p.defs & c.defs: n = max(n, part)
        if c.kind == 'valu':
            if p.defs & (c.uses | c.defs): n = max(n, full)
            if (p.srcc | p.idx) & c.defs: n = max(n, war)
        if c.kind in ('vmem','ds') and p.defs & (c.uses | c.defs): n = max(n, full)
    if p.kind == 'vmem' and p.wide and p.store_data & c.defs:
        n = max(n, 2 if c.kind == 'valu' else 1)
    if p.kind == 'salu' and 'm0' in p.defs and c.kind == 'vmem' and c.lds_dma: n = max(n, 1)
    return n

def required_pad(hist, c):
    d = 0; pad = 0
    for p in reversed(hist):
        if p.kind in ('none','label'): continue
        pad = max(pad, need(p, c) - d)
        d += p.states()
        if d >= 20: break
    return pad

def fix(lines, verbose=False):
    ins = [Ins(l) for l in lines]
    out = []; npad = 0
    for c in ins:
        if c.kind not in ('none','label'):
            h = []
            for p in reversed(out[-60:]):
                if p.op in ('s_branch','s_endpgm'): break
                h.append(p)
            h.reverse()
            pad = required_pad(h, c)
            if pad > 0:
                out.append(Ins('s_nop %d ; auto' % (pad-1))); npad += 1
                if verbose: print('pad', pad, 'before', c.text)
        out.append(c)
    lab = {x.label: i for i, x in enumerate(out) if x.label}
    errs = []
    for i, b in enumerate(out):
        if b.kind == 'branch' and b.target in lab:
            h = []
            for p in reversed(out[max(0,i-60):i]):
                if p.op in ('s_branch','s_endpgm'): break
                h.append(p)
            h.reverse(); h.append(b)
            j = lab[b.target]; d = 0
            while j < len(out) and d < 20:
                c = out[j]
                if c.kind not in ('none','label'):
                    if required_pad(h, c) > 0: errs.append('branch hazard: %s -> %s' % (b.text, c.text))
                    h.append(c); d += c.states()
                    if c.op in ('s_branch','s_endpgm'): break
                j += 1
    return out, errs

def check_waits(ins):
    vm = []; lg = []; errs = []
    for c in ins:
        if c.kind in ('none','label'): continue
        if c.op in ('s_branch','s_endpgm'): vm = []; lg = []; continue
        if c.op == 's_waitcnt':
            t = c.text.split(';')[0]
            m = re.search(r'vmcnt\((\d+)\)', t)
            if m:
                n = int(m.group(1)); vm = vm[len(vm)-n:] if n < len(vm) and n > 0 else ([] if n == 0 else vm)
            m = re.search(r'lgkmcnt\((\d+)\)', t)
            if m:
                n = int(m.group(1))
                if n == 0: lg = []
                elif any(k == 'smem' for k, _ in lg): pass
                elif n < len(lg): lg = lg[len(lg)-n:]
            continue
        touch = c.uses | c.defs
        for d in vm:
            if d & touch and 'nochk' not in c.text: errs.append('vm wait missing: ' + c.text)
        for k, d in lg:
            if d & touch and 'nochk' not in c.text: errs.append('lgkm wait missing: ' + c.text)
        if c.kind == 'vmem': vm.append(set(c.defs))
        if c.kind in ('ds','smem'): lg.append((c.kind, set(c.defs)))
    return errs

class A:
    def __init__(self): self.l = []; self.nl = 0
    def __call__(self, s):
        for x in s.strip('\n').split('\n'):
            x = x.strip()
            if x: self.l.append(x)
    def label(self, base='L'):
        self.nl += 1; return '%s_%d' % (base, self.nl)
    def text(self, verbose=False):
        ins, errs = fix(self.l, verbose)
        errs += check_waits(ins)
        for e in errs: print('ASM CHECK:', e)
        return '\n'.join(('' if x.label else '  ') + x.text for x in ins) + '\n'

def vr(b, n=1, p='v'):
    return '%s%d' % (p, b) if n == 1 else '%s[%d:%d]' % (p, b, b+n-1)

class B(A):
    def __init__(self):
        super().__init__(); self.dq = []; self.vq = []
    def ds(self, s, tag=None): self(s); self.dq.append(tag)
    def vm(self, s, tag=None): self(s); self.vq.append(tag)
    def _cnt(self, q, tag):
        idx = [i for i, t in enumerate(q) if t == tag]
        if not idx: return None
        return len(q) - 1 - idx[-1]
    def wl(self, tag=None):
        if tag is None: self('s_waitcnt lgkmcnt(0)'); self.dq = []; return
        n = self._cnt(self.dq, tag)
        if n is None: return
        assert n <= 15, n
        self('s_waitcnt lgkmcnt(%d)' % n); self.dq = self.dq[len(self.dq)-n:] if n else []
    def wv(self, tag=None):
        if tag is None: self('s_waitcnt vmcnt(0)'); self.vq = []; return
        n = self._cnt(self.vq, tag)
        if n is None: return
        assert n <= 63, n
        self('s_waitcnt vmcnt(%d)' % n); self.vq = self.vq[len(self.vq)-n:] if n else []
    def srd(self, d, ptr, nbytes):
        self('s_mov_b32 s%d, s%d\ns_mov_b32 s%d, s%d\ns_mov_b32 s%d, 0x%x\ns_mov_b32 s%d, 0x00020000' % (d, ptr, d+1, ptr+1, d+2, nbytes, d+3))
```

```python
from common import *
vX, vLr, vSmW, vOW, vL1, vL2, vPW, vPR, vMW, vIdx, vmE, vmO = range(12)
vSel0, vSel1, vDel = 12, 14, 16
vqT, vkT, vvm, vFl, vT = 20, 24, 28, 30, 31
vM, vSt, vK, vV = 32, 64, 80, 88
vAq, vAk, vAv = 104, 112, 120
sWq, sWk, sWv, sWo = 20, 24, 28, 32
sN, sCnt, sOK, sOV, sOKM, sOM, sP1, sC, sOdd, sTmp = 36, 37, 38, 39, 40, 41, 42, 43, 44, 46
sT0 = 48
sRdy, sFlK, sFlP = 56, 57, 58
L_M, L_SX, L_SM, L_O = 0, 8192, 16384, 17408
def slot(i): return ((i + 8) % 10) * 16384
O_LDS = [(0,0,0),(0,0,1),(0,1,2),(0,1,3)]
opreg = {}
def _alloc():
    lst = []
    for m in 'qkv':
        for kc in range(2,8):
            for T in range(2): lst.append((m,kc,T))
    for kc in range(2):
        for Q in range(2):
            for t in range(4):
                if (kc,Q,t) not in O_LDS: lst.append(('o',kc,Q,t))
    for i,k in enumerate(lst): opreg[k] = ('a', 8*i) if i < 32 else ('v', 128 + 8*(i-32))
_alloc()
chunks = [('o',kc,u,nu) for kc in range(2) for u in range(2) for nu in range(2)]
chunks += [(m,kc) for m in 'qkv' for kc in range(2,8)]
chunks += [(m,kc) for m in 'qkv' for kc in range(2)]
def pair_addr(key):
    if key == 'oA': a = 2*16384
    elif key == 'oB': a = 3*16384
    else: a = slot(chunks.index(key))
    return (vX, a) if a < 65536 else ((vL1, a-65536) if a < 131072 else (vL2, a-131072))

ABL = set()
def stage(a, key):
    if 'nostage' in ABL: return
    b, o = pair_addr(key)
    for T in range(2):
        for h in range(2):
            a.ds('ds_read_b128 %s, v%d offset:%d' % (vr(vSt+8*T+4*h,4), b, o + T*8192 + h*1024), 'st')

def prologue(a, cfg):
    a('''
    CH:
    s_load_dwordx4 s[20:23], s[0:1], 16
    s_load_dwordx4 s[28:31], s[0:1], 32
    s_load_dwordx2 s[12:13], s[0:1], 8
    v_and_b32 v40, 63, v0          ; lane
    v_and_b32 v41, 15, v0          ; c
    v_bfe_u32 v42, v0, 4, 2        ; g
    ''')
    a(f'''
    v_lshrrev_b32 v45, 2, v41
    v_lshlrev_b32 v43, 13, v45
    v_lshl_add_u32 v43, v42, 11, v43
    v_and_b32 v44, 3, v40
    v_lshl_add_u32 v43, v44, 4, v43
    s_lshl_b32 s36, s{S_WAVE}, 16
    s_lshl_b32 s37, s{S_RANK}, 6
    s_add_u32 s36, s36, s37
    s_add_u32 s36, s36, {WS_P}
    v_add_u32 v{vPW}, s36, v43
    v_and_b32 v43, 1, v41
    v_lshlrev_b32 v43, 5, v43
    v_lshl_add_u32 v43, v45, 4, v43
    v_lshl_add_u32 v43, v42, 2, v43
    s_lshl_b32 s36, s{S_RANK}, 8
    s_lshl_b32 s37, s{S_WAVE}, 6
    s_add_u32 s36, s36, s37
    s_add_u32 s36, s36, {WS_M}
    v_add_u32 v43, s36, v43
    v_and_b32 v44, 10, v41
    v_cmp_eq_u32 vcc, 0, v44
    v_mov_b32 v44, {OOB}
    v_cndmask_b32 v{vMW}, v44, v43, vcc
    s_lshl_b32 s36, s{S_RANK}, 7
    s_lshl_b32 s37, s{S_WAVE}, 2
    s_add_u32 s36, s36, s37
    s_add_u32 s36, s36, {WS_FL}
    v_mov_b32 v43, s36
    v_cmp_eq_u32 vcc, 0, v40
    v_cndmask_b32 v{vFl}, v44, v43, vcc
    v_mov_b32 v112, 0
    v_mov_b32 v113, 0
    v_mov_b32 v114, 0
    v_mov_b32 v115, 0
    s_mov_b32 s{sP1}, 32768
    ''')
    a.vm('buffer_store_dwordx4 v[112:115], v%d, s[%d:%d], 0 offen sc1' % (vPW, S_WS, S_WS+3), 'z')
    a.vm('buffer_store_dwordx4 v[112:115], v%d, s[%d:%d], s%d offen sc1' % (vPW, S_WS, S_WS+3, sP1), 'z')
    a.vm('buffer_store_dword v112, v%d, s[%d:%d], 0 offen sc1' % (vMW, S_WS, S_WS+3), 'z')
    a.vm('buffer_store_dword v112, v%d, s[%d:%d], 0 offen sc1' % (vFl, S_WS, S_WS+3), 'z')
    a('''
    s_waitcnt lgkmcnt(0)
    s_mov_b32 s24, s22
    s_mov_b32 s25, s23
    s_mov_b32 s32, s30
    s_mov_b32 s33, s31
    ''')
    for s in (sWq, sWk, sWv, sWo): a('s_mov_b32 s%d, 0x400000\ns_mov_b32 s%d, 0x00020000' % (s+2, s+3))
    a('s_mov_b32 s14, 8192\ns_mov_b32 s15, 0x00020000')
    a(f'''
    s_lshl_b32 s36, s{S_WAVE}, 1
    v_lshrrev_b32 v43, 5, v40
    v_add_u32 v43, s36, v43         ; key = 2w + (l>>5)
    v_lshrrev_b32 v44, 1, v41
    v_xor_b32 v43, v43, v44
    v_lshlrev_b32 v43, 5, v43
    v_and_b32 v44, 1, v40
    v_lshl_add_u32 v43, v44, 4, v43
    v_lshl_add_u32 v43, v42, 13, v43
    s_lshl_b32 s36, s{S_WAVE}, 15
    s_lshl_b32 s37, s{S_RANK}, 8
    s_add_u32 s36, s36, s37
    v_add_u32 v96, s36, v43
    s_and_b32 s36, s{S_WAVE}, 1
    s_lshl_b32 s36, s36, 15
    s_lshr_b32 s37, s{S_WAVE}, 1
    s_lshl_b32 s37, s37, 12
    s_add_u32 s36, s36, s37
    s_lshl_b32 s37, s{S_RANK}, 17
    s_add_u32 s36, s36, s37
    v_lshlrev_b32 v43, 4, v40
    v_add_u32 v97, s36, v43
    v_xor_b32 v98, 16, v97
    v_xor_b32 v99, 0x80, v97
    v_add_u32 v99, {16384-2048}, v99
    v_xor_b32 v100, 16, v99
    s_lshl_b32 s38, s{S_WAVE}, 10     ; w*1024
    s_lshl_b32 s39, s{S_WAVE}, 12     ; w*4096
    ''')
    def dma(i):
        ch = chunks[i]
        if ch[0] == 'o':
            _, kc, u, nu = ch
            a('s_add_u32 m0, s39, %d' % slot(i))
            a('s_mov_b32 s40, %d' % ((64*kc + 8*u + 2*nu)*1024))
            for r in range(4):
                a.vm('buffer_load_dwordx4 v%d, s[%d:%d], s40 offen offset:%d lds' % (97+r, sWo, sWo+3, r*1024), i)
        else:
            s = {'q':sWq,'k':sWk,'v':sWv}[ch[0]]
            for m in range(4):
                a('s_add_u32 m0, s38, %d' % (slot(i) + m*4096))
                a('s_mov_b32 s40, %d' % (ch[1]*524288 + m*131072))
                a.vm('buffer_load_dwordx4 v96, s[%d:%d], s40 offen lds' % (s, s+3), i)
    for i in range(9): dma(i)
    a(f'''
    v_lshlrev_b32 v{vLr}, 4, v40
    s_lshl_b32 s36, s{S_WAVE}, 11
    v_add_u32 v{vX}, s36, v{vLr}
    v_add_u32 v{vL1}, 0x10000, v{vX}
    v_add_u32 v{vL2}, 0x20000, v{vX}
    s_lshl_b32 s36, s{S_WAVE}, 2
    v_add_u32 v{vSmW}, s36, v{vLr}
    s_lshr_b32 s36, s{S_WAVE}, 1
    s_lshl_b32 s36, s36, 10
    s_and_b32 s37, s{S_WAVE}, 1
    s_lshl_b32 s37, s37, 3
    s_add_u32 s36, s36, s37
    v_add_u32 v{vOW}, s36, v{vLr}
    v_and_b32 v44, 3, v40
    ; P read: j*8192 + w*2048 + ((l&3)+4g)*64 + ((l>>2)&3)*16
    v_lshl_add_u32 v43, v42, 2, v44
    v_lshlrev_b32 v43, 6, v43
    v_lshrrev_b32 v45, 2, v41
    v_lshl_add_u32 v43, v45, 4, v43
    s_lshl_b32 s36, s{S_RANK}, 13
    s_lshl_b32 s37, s{S_WAVE}, 11
    s_add_u32 s36, s36, s37
    s_add_u32 s36, s36, {WS_P}
    v_add_u32 v{vPR}, s36, v43
    ; masks
    v_and_b32 v43, 1, v41
    v_sub_u32 v{vmO}, 0, v43
    v_not_b32 v{vmE}, v{vmO}
    v_and_b32 v{vIdx}, 0xaaaa, v{vmO}
    v_add_u32 v{vIdx}, 0x4444, v{vIdx}
    s_mov_b32 s{sOdd}, 0xaaaaaaaa
    s_mov_b32 s{sOdd+1}, 0xaaaaaaaa
    v_lshrrev_b32 v43, 2, v41
    v_cmp_eq_u32 vcc, v43, v42
    v_bfe_u32 v43, v41, 1, 1
    v_lshlrev_b32 v43, 4, v43
    v_mov_b32 v44, 0x3f80
    v_lshlrev_b32 v43, v43, v44
    v_cndmask_b32 v{vSel0}, 0, v43, vcc
    v_mov_b32 v{vSel0+1}, 0
    v_mov_b32 v{vSel1}, 0
    v_mov_b32 v{vSel1+1}, v{vSel0}
    v_and_b32 v43, 1, v41
    v_lshlrev_b32 v43, 4, v43
    v_lshlrev_b32 v43, v43, v44
    v_bfe_u32 v45, v41, 1, 2
    ''')
    for i in range(4):
        a('v_cmp_eq_u32 vcc, %d, v45\nv_cndmask_b32 v%d, 0, v43, vcc' % (i, vDel+i))
    a(f'''
    v_lshrrev_b32 v43, 2, v41        ; r
    v_and_b32 v44, 3, v41            ; cc
    v_and_b32 v45, 1, v42            ; g&1
    v_lshrrev_b32 v46, 1, v42        ; g>>1
    v_lshl_add_u32 v47, v43, 1, v45  ; key = 4(r>>1)+2(r&1)+(g&1) = 2r + (g&1)
    v_lshlrev_b32 v48, 9, v47
    v_lshl_add_u32 v48, v46, 12, v48
    s_lshl_b32 s36, s{S_WAVE}, 1
    v_xor_b32 v47, s36, v47
    v_lshl_add_u32 v48, v47, 5, v48
    v_lshl_add_u32 v101, v44, 3, v48
    v_xor_b32 v102, 32, v101
    v_lshl_add_u32 v47, v42, 2, v43  ; row = 4g + r
    v_lshlrev_b32 v47, 10, v47
    v_lshl_add_u32 v47, v44, 5, v47
    s_lshl_b32 s36, s{S_WAVE}, 8
    v_add_u32 v47, s36, v47
    v_and_b32 v48, 1, v43
    v_lshl_add_u32 v47, v48, 4, v47
    v_lshrrev_b32 v48, 1, v43
    v_lshl_add_u32 v104, v48, 7, v47
    v_xor_b32 v105, 16, v104
    v_xor_b32 v106, 0x80, v104
    v_xor_b32 v107, 0x90, v104
    ''')
    a(f'''
    v_lshrrev_b32 v43, 1, v41
    v_lshlrev_b32 v43, 10, v43
    v_lshl_add_u32 v43, v42, 5, v43
    v_and_b32 v44, 1, v41
    v_lshl_add_u32 v43, v44, 4, v43
    s_lshl_b32 s36, s{S_WAVE}, 8
    v_add_u32 v103, s36, v43
    ''')
    def rd_base(i, regs):
        s = slot(i)
        hi = s // 65536 * 65536
        if hi == 0: return regs, s
        t = [108 + k for k in range(len(regs))]
        for x, y in zip(t, regs): a('v_add_u32 v%d, %d, v%d' % (x, hi, y))
        return t, s - hi
    def writeback(i):
        b, o = pair_addr(chunks[i]); base = 64 + 16*(i & 1)
        for T in range(2):
            for h in range(2):
                a.ds('ds_write_b128 v%d, %s offset:%d' % (b, vr(base+8*T+4*h,4), o + T*8192 + h*1024))
    a.wv('z'); a('s_barrier')
    arrive(a, 112, 113, 'CH_AR')
    for i in range(32):
        a.wv(i); a.wl(); a('s_barrier')
        if i + 9 < 32: dma(i+9)
        if i >= 27: writeback(i-1)
        ch = chunks[i]
        if ch[0] == 'o':
            _, kc, u, nu = ch
            regs, o = rd_base(i, [104,105,106,107])
            for Q in range(2):
                for t in range(4):
                    if (kc,Q,t) in O_LDS: p, b = 'v', 32 + 8*O_LDS.index((kc,Q,t))
                    else: p, b = opreg[('o',kc,Q,t)]
                    a.ds('ds_read_b64_tr_b16 %s, v%d offset:%d' % (vr(b+4*u+2*nu,2,p), regs[2*Q+(t>>1)], o + 8*(t&1)))
        else:
            regs, o = rd_base(i, [101,102])
            for T in range(2):
                if i >= 26: p, b = 'v', 64 + 16*(i & 1) + 8*T
                else: p, b = opreg[(ch[0],ch[1],T)]
                for u in range(2):
                    for nu in range(2):
                        a.ds('ds_read_b64_tr_b16 %s, v%d offset:%d' % (vr(b+4*u+2*nu,2,p), regs[T], o + (32*u+nu)*256))
        if i == 23:
            a.vm('buffer_load_dwordx4 v[116:119], v103, s[12:15], 0 offen', 'm0')
            a.vm('buffer_load_dwordx4 v[120:123], v103, s[12:15], 0 offen offset:128', 'm0')
    a.wl(); a('s_barrier')
    writeback(31)
    for k in range(4):
        for h in range(2):
            a.ds('ds_write_b128 v%d, %s offset:%d' % (vX, vr(32+8*k+4*h,4), 32768 + (k>>1)*16384 + (k&1)*8192 + h*1024))
    a.wv(); a.wl()
    a('s_mov_b32 s36, 0x05040100\ns_mov_b32 s37, 0x07060302')
    for k in range(2):
        s = 116 + 4*k; d = vM + 4*k
        a(f'''
        v_perm_b32 v{d}, v{s+2}, v{s}, s36
        v_perm_b32 v{d+1}, v{s+2}, v{s}, s37
        v_perm_b32 v{d+2}, v{s+3}, v{s+1}, s36
        v_perm_b32 v{d+3}, v{s+3}, v{s+1}, s37
        ''')
    stage(a, ('q',0))
    a(f'''
    s_lshl_b32 s36, s{S_RANK}, 13
    s_add_u32 s{sOK}, s36, {WS_KC}
    s_add_u32 s{sOV}, s36, {WS_VC}
    s_add_u32 s{sOKM}, s36, {WS_KM - 262144}
    s_mov_b32 s{sOM}, {WS_M}
    s_mov_b32 s{sC}, {f32(128**-0.5*LOG2E)}
    s_mov_b32 s{sN}, 0
    ''')
    for r in range(vAq, 128, 2): a('v_mov_b64 v[%d:%d], 0' % (r, r+1))
    a.wl()
    dbgpoll(a, vqT, vqT+1, 'CH_BP')
    a(f'''
    s_cmp_eq_u32 s98, 0
    s_cbranch_scc1 FALLBACK
    s_movk_i32 s{sFlK}, 0x1000
    s_movk_i32 s{sFlP}, 0x2000
    s_mov_b32 s{sN}, -1
    ''')
    rdy(a, 'CH_R0')
    a(f's_mov_b32 s{sN}, 0')
    a.vm(f'buffer_load_dwordx4 {vr(vK,4)}, v{vX}, s[4:7], s{sOK} offen sc1')
    a.vm(f'buffer_load_dwordx4 {vr(vK+4,4)}, v{vX}, s[4:7], s{sOK} offen offset:1024 sc1')
    a.vm(f'buffer_load_dwordx4 {vr(vV,4)}, v{vX}, s[4:7], s{sOV} offen sc1')
    a.vm(f'buffer_load_dwordx4 {vr(vV+4,4)}, v{vX}, s[4:7], s{sOV} offen offset:1024 sc1')
    a.wv(); a.wl()

def rdy(a, L):
    a(f'''
    s_mov_b32 s{sCnt}, 0
    {L}:
    buffer_load_dword v{vqT}, v{vFl}, s[4:7], s{sFlK} offen sc1
    buffer_load_dword v{vqT+1}, v{vFl}, s[4:7], s{sFlP} offen sc1
    s_add_u32 s{sCnt}, s{sCnt}, 1
    s_cmp_gt_u32 s{sCnt}, {POLLMAX}
    s_cbranch_scc1 KEND
    s_waitcnt vmcnt(0)
    v_min_u32 v{vqT}, v{vqT}, v{vqT+1}
    v_readfirstlane_b32 s{sRdy}, v{vqT}
    s_sub_u32 s{sRdy}, s{sRdy}, 2
    s_cmp_lt_i32 s{sRdy}, s{sN}
    s_cbranch_scc1 {L}
    ''')

def stamp(a, cfg, k):
    if k not in cfg.get('stamps', ()): return
    a.wl(); a('s_memtime s[62:63]\ns_waitcnt lgkmcnt(0)\ns_sub_u32 s80, s62, s81\ns_mov_b32 s81, s62\ns_add_u32 s%d, s%d, s80' % (64+k, 64+k))

def smf(a, m, kc, T):
    acc = {'q':vAq,'k':vAk,'v':vAv}[m] + 4*T
    if kc < 2: p, b = 'v', vSt + 8*T
    else: p, b = opreg[(m,kc,T)]
    a('v_smfmac_f32_16x16x64_bf16 %s, %s, %s, v%d' % (vr(acc,4), vr(vM+4*kc,4), vr(b,8,p), vIdx))

def step(a, par, st, cfg, L):
    ph = par ^ 1
    V = vV + 8*par; Vn = vV + 8*(par^1)
    W = 's[4:7]'
    a.dq = []; a.vq = []
    a.ds(f'ds_write_b128 v{vX}, {vr(vM,4)} offset:{L_M}')
    a.ds(f'ds_write_b128 v{vX}, {vr(vM+4,4)} offset:{L_M+1024}')
    a(f's_add_u32 s{sOV}, s{sOV}, 262144')
    a(f's_add_u32 s{sOK}, s{sOK}, 262144')
    a.wl(); a('s_barrier')
    stamp(a, cfg, 0)
    qo = [0,2,3,4,5,6,1,7]
    for kc in qo: a.ds(f'ds_read_b128 {vr(vM+4*kc,4)}, v{vLr} offset:{L_M+kc*1024}', 'M%d'%kc)
    a(f's_cmp_lt_i32 s{sRdy}, s{sN}\ns_cbranch_scc1 {L}RS\n{L}RB:\nv_mov_b32 v{vT}, s{sN}')
    if 'novm' not in ABL:
        a.vm(f'buffer_store_dwordx4 {vr(vkT,4)}, v{vX}, {W}, s{sOKM} offen sc1', 'pub')
        a.vm(f'buffer_store_dwordx2 {vr(vvm,2)}, v{vX}, {W}, s{sOKM} offen offset:1024 sc1', 'pub')
        a.vm(f'buffer_store_dword v{vT}, v{vFl}, {W}, 0 offen sc1', 'pub')
        a.vm(f'buffer_load_dwordx4 {vr(Vn,4)}, v{vX}, {W}, s{sOV} offen sc1', 'V')
        a.vm(f'buffer_load_dwordx4 {vr(Vn+4,4)}, v{vX}, {W}, s{sOV} offen offset:1024 sc1', 'V')
    a(f's_add_u32 s{sOKM}, s{sOKM}, 262144')
    for i, kc in enumerate(qo):
        a.wl('M%d'%kc)
        if kc == 1: a.wl('st')
        smf(a,'q',kc,0); smf(a,'q',kc,1)
        if kc == 0: stage(a, ('q',1))
        if kc == 1: stage(a, ('k',0))
    stamp(a, cfg, 1)
    pk = vkT
    def sums(acc, dst):
        return [f'v_add_f32 v{acc}, v{acc}, v{acc+1}', f'v_add_f32 v{acc+2}, v{acc+2}, v{acc+3}',
                f'v_add_f32 v{acc+4}, v{acc+4}, v{acc+5}', f'v_add_f32 v{acc+6}, v{acc+6}, v{acc+7}',
                f'v_cvt_pk_bf16_f32 v{dst}, v{acc}, v{acc+2}', f'v_cvt_pk_bf16_f32 v{dst+1}, v{acc+4}, v{acc+6}']
    def transp(acc, T):
        a(f'v_mfma_f32_16x16x16_bf16 {vr(acc+4*T,4)}, {vr(pk,2)}, {vr(vSel0+2*T,2)}, 0')
    def cvt4(acc, dst):
        return [f'v_cvt_pk_bf16_f32 v{dst+i}, v{acc+2*i}, v{acc+2*i+1}' for i in range(4)]
    s = sums(vAq, pk); c = cvt4(vAq, vqT)
    smf(a,'k',2,0); smf(a,'k',2,1); smf(a,'k',3,0)
    a(s[0]); a(s[1]); smf(a,'k',3,1); a(s[2]); a(s[3])
    a.wl('st'); smf(a,'k',0,0); a(s[4]); a(s[5]); smf(a,'k',0,1)
    stage(a, ('k',1))
    transp(vAq,0); transp(vAq,1)
    smf(a,'k',4,0); smf(a,'k',4,1); smf(a,'k',5,0)
    a(c[0]); a(c[1]); smf(a,'k',5,1); a(c[2]); a(c[3])
    smf(a,'k',6,0)
    a(f'v_mfma_f32_16x16x32_bf16 {vr(vAq,4)}, {vr(vK,4)}, {vr(vqT,4)}, 0')
    a(f'v_mfma_f32_16x16x32_bf16 {vr(vAq+4,4)}, {vr(vK+4,4)}, {vr(vqT,4)}, 0')
    smf(a,'k',6,1)
    a.wl('st'); smf(a,'k',1,0); smf(a,'k',1,1)
    stage(a, ('v',0))
    smf(a,'k',7,0)
    for r in range(2): a(f'v_cndmask_b32 v{vAq+r}, v{vAq+r}, v{vAq+4+r}, s[{sOdd}:{sOdd+1}]')
    smf(a,'k',7,1)
    for r in range(2,4): a(f'v_cndmask_b32 v{vAq+r}, v{vAq+r}, v{vAq+4+r}, s[{sOdd}:{sOdd+1}]')
    s = sums(vAk, pk); c = cvt4(vAk, vkT)
    smf(a,'v',2,0)
    a.ds(f'ds_write_b128 v{vX}, {vr(vAq,4)} offset:{L_SX}', 'sx')
    smf(a,'v',2,1)
    a(s[0]); a(s[1]); smf(a,'v',3,0); a(s[2]); a(s[3]); a(s[4]); a(s[5])
    smf(a,'v',3,1)
    transp(vAk,0); transp(vAk,1)
    a.wl(); a('s_barrier')
    smf(a,'v',0,0)
    SX = [vAq, vAq+4, vK, vK+4]
    for w in range(2): a.ds(f'ds_read_b128 {vr(SX[w],4)}, v{vLr} offset:{L_SX+w*2048}', 'x%d'%w)
    smf(a,'v',0,1)
    for w in range(2,4): a.ds(f'ds_read_b128 {vr(SX[w],4)}, v{vLr} offset:{L_SX+w*2048}', 'x%d'%w)
    a(c[0]); a(c[1]); a(c[2]); a(c[3])
    smf(a,'v',4,0)
    a(f'v_mfma_f32_16x16x32_bf16 {vr(vAk,4)}, {vr(vkT,4)}, {vr(vqT,4)}, 0')
    stage(a, ('v',1))
    smf(a,'v',4,1)
    a.wl('x1')
    for r in range(2): a(f'v_add_f32 v{vAq+r}, v{vAq+r}, v{vAq+4+r}')
    smf(a,'v',5,0)
    a(f'v_cndmask_b32 v{vAk}, v{vAk}, v{vAk+2}, s[{sOdd}:{sOdd+1}]')
    a.ds(f'ds_write_b32 v{vSmW}, v{vAk} offset:{L_SM}', 'sm')
    smf(a,'v',5,1)
    for r in range(2,4): a(f'v_add_f32 v{vAq+r}, v{vAq+r}, v{vAq+4+r}')
    smf(a,'v',6,0)
    a.wl('x3')
    for r in range(2): a(f'v_add_f32 v{vK+r}, v{vK+r}, v{vK+4+r}')
    smf(a,'v',6,1)
    a.wl(); a('s_barrier')
    a.ds(f'ds_read_b128 {vr(vAk+4,4)}, v{vLr} offset:{L_SM}', 'sm')
    smf(a,'v',1,0)
    for r in range(2,4): a(f'v_add_f32 v{vK+r}, v{vK+r}, v{vK+4+r}')
    smf(a,'v',1,1)
    for r in range(2): a(f'v_add_f32 v{vAq+r}, v{vAq+r}, v{vK+r}')
    smf(a,'v',7,0)
    for r in range(2,4): a(f'v_add_f32 v{vAq+r}, v{vAq+r}, v{vK+r}')
    smf(a,'v',7,1)
    stamp(a, cfg, 2)
    m, t, sm = vAq+4, vAq+5, vAk+4
    a(f'v_max3_f32 v{m}, v{vAq}, v{vAq+1}, v{vAq+2}')
    a.wl('sm')
    a(f'v_add_f32 v{sm}, v{sm}, v{sm+1}\nv_add_f32 v{sm+2}, v{sm+2}, v{sm+3}\nv_add_f32 v{sm}, v{sm}, v{sm+2}')
    a(f'v_max3_f32 v{m}, v{m}, v{vAq+3}, v{sm}')
    if 'novm' not in ABL:
        a.vm(f'buffer_load_dwordx4 {vr(vK,4)}, v{vX}, {W}, s{sOK} offen sc1', 'K')
        a.vm(f'buffer_load_dwordx4 {vr(vK+4,4)}, v{vX}, {W}, s{sOK} offen offset:1024 sc1', 'K')
    a(f'v_max_f32_dpp v{m}, v{m}, v{m} quad_perm:[1,0,3,2] row_mask:0xf bank_mask:0xf')
    s = sums(vAv, vvm)
    a(f'v_mov_b32 v{t}, v{m}'); a(s[0]); a(s[1])
    a(f'v_permlane16_swap_b32 v{m}, v{t}\nv_max_f32 v{m}, v{m}, v{t}')
    a(f'v_mov_b32 v{t}, v{m}'); a(s[2]); a(s[3])
    a(f'v_permlane32_swap_b32 v{m}, v{t}\nv_max_f32 v{m}, v{m}, v{t}')
    a(f'v_mul_f32 v{m}, s{sC}, v{m}')
    for r in range(4): a(f'v_fma_f32 v{vAq+r}, v{vAq+r}, s{sC}, -v{m}')
    a(f'v_fma_f32 v{sm}, v{sm}, s{sC}, -v{m}')
    for r in range(4): a(f'v_exp_f32 v{vAq+r}, v{vAq+r}')
    a(f'v_exp_f32 v{sm}, v{sm}')
    P0, B0, B1, Bm, Do = vAk, vM, vM+4, vM+8, vM+12
    a(f'v_cvt_pk_bf16_f32 v{P0}, v{vAq}, v{vAq+1}\nv_cvt_pk_bf16_f32 v{P0+1}, v{vAq+2}, v{vAq+3}')
    a(s[4]); a(s[5])
    if par == 1:
        a(f's_cmp_eq_u32 s{sN}, 63\ns_cbranch_scc1 {L}TAIL')
    dp = 'row_mask:0xf bank_mask:0xf'
    def bmask(B, mk):
        for i in range(4):
            a(f'v_and_b32_dpp v{B+i}, v{P0+(i&1)}, v{mk} quad_perm:{"[0,0,2,2]" if i<2 else "[1,1,3,3]"} {dp}')
    bmask(B0, vmE)
    a(f'v_mov_b32_dpp v{P0+2}, v{sm} quad_perm:[0,0,2,2] {dp}\nv_mov_b32_dpp v{P0+3}, v{sm} quad_perm:[1,1,3,3] {dp}')
    a(f'v_mfma_f32_16x16x32_bf16 {vr(Do,4)}, {vr(V,4)}, {vr(B0,4)}, 0')
    bmask(B1, vmO)
    a(f'v_cvt_pk_bf16_f32 v{P0+2}, v{P0+2}, v{P0+3}')
    a(f'v_add_f32 v{m}, v{vAq}, v{vAq+1}')
    a(f'v_mfma_f32_16x16x32_bf16 {vr(Do,4)}, {vr(V+4,4)}, {vr(B1,4)}, {vr(Do,4)}')
    a(f'v_and_b32 v{Bm}, v{P0+2}, v{vmE}\nv_and_b32 v{Bm+1}, v{P0+2}, v{vmO}')
    a(f'v_add_f32 v{t}, v{vAq+2}, v{vAq+3}\nv_add_f32 v{m}, v{m}, v{sm}')
    a(f'v_mfma_f32_16x16x16_bf16 {vr(Do,4)}, {vr(vvm,2)}, {vr(Bm,2)}, {vr(Do,4)}')
    a(f'v_add_f32 v{m}, v{m}, v{t}')
    stage(a, 'oA')
    a(f'v_add_f32_dpp v{m}, v{m}, v{m} quad_perm:[1,0,3,2] {dp}')
    z = ['v_mov_b64 v[%d:%d], 0' % (r, r+1) for r in list(range(vM+16, vM+32, 2)) + list(range(vM, vM+16, 2))]
    a(f'v_mov_b32 v{t}, v{m}'); a(z[0]); a(z[1])
    a(f'v_permlane16_swap_b32 v{m}, v{t}\nv_add_f32 v{m}, v{m}, v{t}')
    a(f'v_mov_b32 v{t}, v{m}'); a(z[2]); a(z[3])
    a(f'v_permlane32_swap_b32 v{m}, v{t}\nv_add_f32 v{m}, v{m}, v{t}')
    a(f'v_rcp_f32 v{m}, v{m}'); a(z[4])
    for r in range(4): a(f'v_mul_f32 v{Do+r}, v{Do+r}, v{m}')
    a(f'v_cvt_pk_bf16_f32 v{P0}, v{Do}, v{Do+1}\nv_cvt_pk_bf16_f32 v{P0+1}, v{Do+2}, v{Do+3}')
    a.ds(f'ds_write_b64 v{vOW}, {vr(P0,2)} offset:{L_O}')
    for x in z[5:10]: a(x)
    a.wl(); a('s_barrier')
    OA = vAv
    a.ds(f'ds_read_b128 {vr(OA,4)}, v{vLr} offset:{L_O}', 'o0')
    a.ds(f'ds_read_b128 {vr(OA+4,4)}, v{vLr} offset:{L_O+1024}', 'o1')
    for x in z[10:]: a(x)
    stamp(a, cfg, 3)
    def omf(kc, Q, tau):
        if (kc,Q,tau) in O_LDS: p, b = 'v', vSt + 8*(tau & 1)
        else: p, b = opreg[('o',kc,Q,tau)]
        a('v_smfmac_f32_16x16x64_bf16 %s, %s, %s, v%d' % (vr(vM+16*Q+4*tau,4), vr(OA+4*kc,4), vr(b,8,p), vIdx))
    def fin(Q, tau):
        acc = vM+16*Q+4*tau; d = vAq+4*Q+tau
        r = [f'v_add_f32 v{acc}, v{acc}, v{acc+1}', f'v_add_f32 v{acc+2}, v{acc+2}, v{acc+3}', f'v_cvt_pk_bf16_f32 v{d}, v{acc}, v{acc+2}']
        if tau == 0: r.append(f'v_or_b32 v{d}, 1, v{d}' if ph else f'v_and_b32 v{d}, -2, v{d}')
        return r
    seq = [(kc,Q,tp+i) for Q in range(2) for tp in (0,2) for kc in range(2) for i in range(2)]
    fill = {6: fin(0,0)[:2], 7: fin(0,0)[2:], 8: fin(0,1)[:2], 9: fin(0,1)[2:], 10: fin(0,2)[:2], 11: fin(0,2)[2:]+fin(0,3)[:1],
            12: fin(0,3)[1:], 13: ['ST0'], 14: fin(1,0)[:2], 15: fin(1,0)[2:]+fin(1,1)}
    a.wl('o0')
    for i, o in enumerate(seq):
        if i == 2: a.wl('o1')
        if i == 12: a.wl('st')
        omf(*o)
        if i == 1: stage(a, 'oB')
        for x in fill.get(i, []):
            if x == 'ST0': a.vm(f'buffer_store_dwordx4 {vr(vAq,4)}, v{vPW}, {W}, 0 offen {st}', 'P')
            else: a(x)
    for x in fin(1,2) + fin(1,3): a(x)
    a.vm(f'buffer_store_dwordx4 {vr(vAq+4,4)}, v{vPW}, {W}, s{sP1} offen {st}', 'P')
    stage(a, ('q',0))
    a(f's_add_u32 s{sN}, s{sN}, 1\ns_mov_b32 s{sCnt}, 0')
    for r in list(range(vAk, 128, 2)) + list(range(vAq, vAk, 2)): a('v_mov_b64 v[%d:%d], 0' % (r, r+1))
    if cfg.get('post_hook'): cfg['post_hook'](a, par, L)
    stamp(a, cfg, 4)
    if 7 in cfg.get('stamps', ()): a('s_waitcnt vmcnt(0)')
    stamp(a, cfg, 7)
    for i in range(cfg.get('d1', 0)): a('s_sleep 1')
    G, R, D = vM, vM+8, vM+16
    a(f'''
    {L}P1:
    buffer_load_dwordx4 {vr(R,4)}, v{vPR}, {W}, 0 offen sc1
    buffer_load_dwordx4 {vr(R+4,4)}, v{vPR}, {W}, 0 offen offset:1024 sc1
    s_add_u32 s{sCnt}, s{sCnt}, 1
    s_cmp_gt_u32 s{sCnt}, {POLLMAX}
    s_cbranch_scc1 KEND
    s_waitcnt vmcnt(1)
    v_mfma_f32_16x16x32_bf16 {vr(D,4)}, {vr(R,4)}, {vr(vDel,4)}, 0
    s_waitcnt vmcnt(0)
    v_mfma_f32_16x16x32_bf16 {vr(D,4)}, {vr(R+4,4)}, {vr(vDel,4)}, {vr(D,4)}
    v_bitop3_b32 v{vT}, v{R}, v{R+4}, 1 bitop3:{'0x80' if ph else '0xa8'}
    v_cmp_ne_u32 vcc, {ph}, v{vT}
    s_cbranch_vccnz {L}P1
    v_add_f32 v{D}, v{D}, v{D+1}
    v_add_f32 v{D+2}, v{D+2}, v{D+3}
    v_add_f32 v{D}, v{D}, v{D+2}
    v_mov_b32_dpp v{D+1}, v{D} quad_perm:[2,3,2,3] {dp}
    v_cvt_pk_bf16_f32 v{D}, v{D}, v{D+1}
    {f'v_or_b32 v{D}, 1, v{D}' if ph else f'v_and_b32 v{D}, -2, v{D}'}
    buffer_store_dword v{D}, v{vMW}, {W}, 0 offen {st}
    ''')
    if cfg.get('time'): a(f's_add_u32 s72, s72, s{sCnt}')
    a(f's_mov_b32 s{sCnt}, 0')
    stamp(a, cfg, 5)
    for i in range(cfg.get('d2', 0)): a('s_sleep 1')
    t3 = '0x80' if ph else '0xfe'
    a(f'''
    {L}P2:
    buffer_load_dwordx4 {vr(G,4)}, v{vX}, {W}, s{sOM} offen sc1
    buffer_load_dwordx4 {vr(G+4,4)}, v{vX}, {W}, s{sOM} offen offset:1024 sc1
    s_add_u32 s{sCnt}, s{sCnt}, 1
    s_cmp_gt_u32 s{sCnt}, {POLLMAX}
    s_cbranch_scc1 KEND
    s_waitcnt vmcnt(1)
    v_bitop3_b32 v{vT}, v{G}, v{G+1}, v{G+2} bitop3:{t3}
    s_waitcnt vmcnt(0)
    v_bitop3_b32 v{vT}, v{vT}, v{G+3}, v{G+4} bitop3:{t3}
    v_bitop3_b32 v{vT}, v{vT}, v{G+5}, v{G+6} bitop3:{t3}
    v_bitop3_b32 v{vT}, v{vT}, v{G+7}, 1 bitop3:{'0x80' if ph else '0xa8'}
    v_cmp_ne_u32 vcc, {ph}, v{vT}
    s_cbranch_vccnz {L}P2
    ''')
    if cfg.get('time'): a(f's_add_u32 s73, s73, s{sCnt}')
    stamp(a, cfg, 6)
    a.vq = []

def loop(a, st, cfg, L):
    a(f'{L}LOOP:')
    step(a, 0, st, cfg, L+'A')
    step(a, 1, st, cfg, L+'B')
    a(f's_branch {L}LOOP')
    a(f'{L}BTAIL:')
    a(f'''
    buffer_store_dwordx4 {vr(vkT,4)}, v{vX}, s[4:7], s{sOKM} offen sc1
    buffer_store_dwordx2 {vr(vvm,2)}, v{vX}, s[4:7], s{sOKM} offen offset:1024 sc1
    v_mov_b32 v{vT}, 0xff
    s_waitcnt vmcnt(0)
    buffer_store_dword v{vT}, v{vFl}, s[4:7], 0 offen sc1
    s_branch CH_END
    ''')
    for x in 'AB':
        a(f'{L}{x}RS:')
        rdy(a, f'{L}{x}RL')
        a(f's_branch {L}{x}RB')

def chain(a, cfg):
    ABL.clear(); ABL.update(cfg.get('abl', ()))
    prologue(a, cfg)
    if cfg.get('time'):
        a(f's_memtime s[{sT0}:{sT0+1}]\ns_waitcnt lgkmcnt(0)\ns_mov_b32 s81, s{sT0}')
        for k in range(10): a('s_mov_b32 s%d, 0' % (64+k))
    a(f's_cmp_eq_u32 s{S_PURE}, 0\ns_cbranch_scc1 CHS_LOOP')
    loop(a, '', cfg, 'CHP_')
    loop(a, 'sc1', cfg, 'CHS_')
    a('CH_END:')
```

```python
from asmlib import *
NAME = 'adaLN_cond__memory_aug_recurrent_mem_tr__dense_activation_silu__prompt'
WS_BYTES = 0x10000000
MB = 1 << 20
WS_H   = 0
WS_KC  = 2*MB
WS_VC  = 18*MB
WS_QC  = 34*MB
WS_KM  = 50*MB + 0x40000
WS_P   = 67*MB
WS_M   = 67*MB + 0x40000
WS_FL  = 67*MB + 0x50000
WS_MOD = 67*MB + 0x60000
WS_X   = 68*MB
S_WS = 4
S_DBG = 8
S_T = 12
S_RANK = 16; S_WAVE = 17; S_PURE = 18
LOG2E = 1.4426950408889634
import struct
def f32(x): return '0x%08x' % struct.unpack('<I', struct.pack('<f', x))[0]
S_TEAM = 19; S_BAR = 3
D_CNT, D_BAR1, D_BAR2, D_HRDY = 0, 64, 128, 192
WS_XF  = WS_FL + 16384
WS_H2  = 68*MB
WS_PY  = 69*MB
OOB = '0x80000000'
POLLMAX = '0x20000'
def arrive(a, v0, v1, L, off=None):
    a(f'''
    s_cmp_lg_u32 s{S_WAVE}, 0
    s_cbranch_scc1 {L}
    s_lshl_b32 s98, s{S_TEAM}, 2
    s_add_u32 s98, s98, {'s%d' % S_BAR if off is None else off}
    v_mov_b32 v{v0}, 1
    v_mov_b32 v{v1}, s98
    s_mov_b64 exec, 1
    buffer_atomic_add v{v0}, v{v1}, s[{S_DBG}:{S_DBG+3}], 0 offen sc1
    s_mov_b64 exec, -1
    {L}:
    ''')
def dbgpoll(a, va, vv, L, hrdy=False, sleep=0):
    a(f'''
    v_mbcnt_lo_u32_b32 v{vv}, -1, 0
    v_mbcnt_hi_u32_b32 v{vv}, -1, v{vv}
    v_lshlrev_b32 v{va}, 2, v{vv}
    v_add_u32 v{va}, s{S_BAR}, v{va}
    ''')
    if hrdy:
        a(f'''
        v_cmp_gt_u32 vcc, 8, v{vv}
        v_lshlrev_b32 v{vv}, 2, v{vv}
        v_add_u32 v{vv}, {D_HRDY}, v{vv}
        v_cndmask_b32 v{va}, v{va}, v{vv}, vcc
        ''')
    a(f'''
    s_mov_b32 s99, 0
    s_mov_b64 exec, 0x1ff
    {L}:
    buffer_load_dword v{vv}, v{va}, s[{S_DBG}:{S_DBG+3}], 0 offen sc1
    s_add_u32 s99, s99, 1
    s_cmp_gt_u32 s99, {POLLMAX}
    s_cbranch_scc1 KEND
    s_waitcnt vmcnt(0)
    v_cmp_eq_u32 vcc, 32, v{vv}
    s_mov_b32 s98, 0
    s_bitcmp1_b32 vcc_lo, 8
    s_cbranch_scc1 {L}X
    s_mov_b32 s98, 1
    s_cmp_eq_u32 vcc_lo, {'0x0f' if hrdy else '0xff'}
    s_cbranch_scc1 {L}X
    {('s_sleep %d' % sleep) if sleep else ''}
    s_branch {L}
    {L}X:
    s_mov_b64 exec, -1
    ''')
def dbgpoll_wg(a, va, vv, L, lds, hrdy=False):
    a(f's_cmp_lg_u32 s{S_WAVE}, 0\ns_cbranch_scc1 {L}B')
    dbgpoll(a, va, vv, L, hrdy, sleep=4)
    a(f'''
    v_mov_b32 v{va}, {lds}
    v_mov_b32 v{vv}, s98
    ds_write_b32 v{va}, v{vv}
    s_waitcnt lgkmcnt(0)
    {L}B:
    s_barrier
    v_mov_b32 v{va}, {lds}
    ds_read_b32 v{vv}, v{va}
    s_waitcnt lgkmcnt(0)
    v_readfirstlane_b32 s98, v{vv}
    s_cmp_eq_u32 s98, 0
    s_cbranch_scc1 FALLBACK
    ''')
WS_TM = 80*MB
```

```python
import sys
sys.path.insert(0, 'gen')
from common import *
import chain as ch, qkv as qk, xrole as xr
def body(cfg):
    a = B()
    if cfg.get('time'): a('s_memtime s[60:61]')
    a(f'''
    s_cmp_ge_u32 s2, 256
    s_cbranch_scc1 KEND
    s_load_dwordx4 s[24:27], s[0:1], 104
    s_getreg_b32 s{S_TEAM}, hwreg(HW_REG_XCC_ID, 0, 4)
    v_lshrrev_b32 v1, 6, v0
    s_and_b32 s{S_TEAM}, s{S_TEAM}, {cfg.get('xmask', 7)}
    v_readfirstlane_b32 s{S_WAVE}, v1
    s_lshl_b32 s20, s{S_TEAM}, 2
    v_mov_b32 v3, 1
    v_mov_b32 v4, s20
    v_mov_b32 v5, 0
    s_mov_b32 s{S_PURE}, 1
    s_mov_b32 s{S_BAR}, {D_BAR1}
    s_waitcnt lgkmcnt(0)
    ''')
    a.srd(S_DBG, 24, 256); a.srd(S_WS, 26, WS_BYTES)
    a(f'''
    s_cmp_lg_u32 s{S_WAVE}, 0
    s_cbranch_scc1 E_SK
    s_mov_b64 exec, 1
    buffer_atomic_add v3, v4, s[8:11], 0 offen offset:{D_CNT} sc0 sc1
    s_waitcnt vmcnt(0)
    ds_write_b32 v5, v3
    s_waitcnt lgkmcnt(0)
    s_mov_b64 exec, -1
    E_SK:
    s_barrier
    ds_read_b32 v3, v5
    s_waitcnt lgkmcnt(0)
    v_readfirstlane_b32 s{S_RANK}, v3
    s_barrier
    s_cmp_lt_u32 s{S_RANK}, 32
    s_cbranch_scc1 DISP
    v_mov_b32 v3, 32
    s_mov_b64 exec, 1
    buffer_store_dword v3, v5, s[8:11], 0 offen offset:{D_BAR1+32} sc1
    s_mov_b64 exec, -1
    FALLBACK:
    s_waitcnt vmcnt(0) lgkmcnt(0)
    s_barrier
    s_lshr_b32 s{S_TEAM}, s2, 5
    s_and_b32 s{S_RANK}, s2, 31
    s_mov_b32 s{S_PURE}, 0
    s_mov_b32 s{S_BAR}, {D_BAR2}
    v_mbcnt_lo_u32_b32 v0, -1, 0
    v_mbcnt_hi_u32_b32 v0, -1, v0
    s_lshl_b32 s20, s{S_WAVE}, 6
    v_add_u32 v0, s20, v0
    DISP:
    s_cmp_ge_u32 s{S_TEAM}, 4
    s_cbranch_scc1 XR
    s_cmp_lg_u32 s{S_TEAM}, 0
    s_cbranch_scc1 QKV
    ''')
    ch.chain(a, cfg)
    if cfg.get('time'):
        a(f'''
        s_memtime s[50:51]
        s_waitcnt lgkmcnt(0)
        s_sub_u32 s50, s50, s48
        s_sub_u32 s48, s48, s60
        s_cmp_lg_u32 s{S_WAVE}, 0
        s_cbranch_scc1 KEND
        s_lshl_b32 s20, s{S_RANK}, 6
        s_add_u32 s20, s20, {WS_TM}
        v_mov_b32 v40, s48
        v_mov_b32 v41, s50
        v_mov_b32 v42, s{ch.sN}
        v_mov_b32 v43, s64
        v_mov_b32 v44, s20
        s_mov_b64 exec, 1
        buffer_store_dwordx4 v[40:43], v44, s[4:7], 0 offen
        v_mov_b32 v48, s65
        v_mov_b32 v49, s66
        v_mov_b32 v50, s67
        v_mov_b32 v51, s68
        v_mov_b32 v52, s71
        v_mov_b32 v53, s69
        v_mov_b32 v54, s70
        v_mov_b32 v55, s72
        v_mov_b32 v56, s73
        buffer_store_dwordx4 v[48:51], v44, s[4:7], 0 offen offset:16
        buffer_store_dwordx4 v[52:55], v44, s[4:7], 0 offen offset:32
        buffer_store_dword v56, v44, s[4:7], 0 offen offset:48
        ''')
    a('KEND:\ns_endpgm')
    qk.qkv(a, cfg)
    xr.xrole(a, cfg)
    return a.text(verbose=cfg.get('verbose'))
def full(cfg={}):
    ref = open('cdna_kernels/%s.s.ref' % NAME).read().split('\n')
    i = [k for k, l in enumerate(ref) if l.startswith('; @launch')][0]
    j = [k for k, l in enumerate(ref) if l.startswith(NAME + '_kernel:')][0]
    e = [k for k, l in enumerate(ref) if l.startswith('s_endpgm')][0]
    head = ref[:i] + ['; @launch grid=(256,1,1) block=(256,1,1) lds=163840'] + ref[i+1:j+1]
    tail = [l.replace('next_free_vgpr 256', 'next_free_vgpr 512') for l in ref[e:]]
    return '\n'.join(head) + '\n' + body(cfg) + '\n'.join(tail)
if __name__ == '__main__':
    out = sys.argv[1] if len(sys.argv) > 1 else 'cdna_kernels/%s.s' % NAME
    cfg = eval(sys.argv[2]) if len(sys.argv) > 2 else {}
    open(out, 'w').write(full(cfg))
```

```python
from common import *
def qkv(a, cfg):
    vL, vF, vA0, vA1, vR = 1, 2, 3, 4, 6
    vH, vB, vD, vO, vT = 16, 48, 112, 128, 10
    sW, sO, sH, sN = 20, 36, 37, 38
    a(f'''
    QKV:
    s_load_dwordx4 s[24:27], s[0:1], 16
    s_load_dwordx2 s[28:29], s[0:1], 32
    v_and_b32 v40, 63, v0
    v_and_b32 v41, 15, v0
    v_bfe_u32 v42, v0, 4, 2
    v_lshlrev_b32 v{vL}, 4, v40
    s_lshl_b32 s36, s{S_TEAM}, 12
    s_lshl_b32 s37, s{S_RANK}, 7
    s_add_u32 s36, s36, s37
    s_lshl_b32 s37, s{S_WAVE}, 2
    s_add_u32 s36, s36, s37
    s_add_u32 s36, s36, {WS_FL}
    v_mov_b32 v43, {OOB}
    v_mov_b32 v44, s36
    v_cmp_eq_u32 vcc, 0, v40
    v_cndmask_b32 v{vF}, v43, v44, vcc
    v_mov_b32 v43, 0
    ''')
    a.vm(f'buffer_store_dword v43, v{vF}, s[4:7], 0 offen sc1', 'z')
    a(f'''
    s_waitcnt lgkmcnt(0)
    s_cmp_eq_u32 s{S_TEAM}, 1
    s_cselect_b32 s20, s26, s24
    s_cselect_b32 s21, s27, s25
    s_cmp_eq_u32 s{S_TEAM}, 2
    s_cselect_b32 s20, s28, s20
    s_cselect_b32 s21, s29, s21
    s_mov_b32 s22, 0x400000
    s_mov_b32 s23, 0x00020000
    v_lshlrev_b32 v43, 1, v42
    v_xor_b32 v43, v43, v41
    v_lshlrev_b32 v43, 4, v43
    v_lshl_add_u32 v43, v42, 13, v43
    s_lshl_b32 s36, s{S_RANK}, 8
    v_add_u32 v{vA0}, s36, v43
    v_xor_b32 v{vA1}, 0x80, v{vA0}
    s_lshl_b32 s36, s{S_WAVE}, 20
    s_lshl_b32 s37, s{S_WAVE}, 15
    ''')
    for i in range(32):
        a(f's_add_u32 m0, s37, {i*1024}')
        a.vm(f'buffer_load_dwordx4 v{vA1 if (i>>1)&1 else vA0}, s[20:23], s36 offen lds', 'w')
        a('s_add_u32 s36, s36, 32768')
    a(f'''
    v_lshrrev_b32 v43, 2, v41
    v_and_b32 v44, 3, v41
    v_and_b32 v45, 1, v42
    v_lshl_add_u32 v45, v45, 2, v43
    s_lshl_b32 s36, s{S_WAVE}, 1
    v_xor_b32 v45, s36, v45
    v_lshl_add_u32 v43, v42, 3, v43
    v_lshlrev_b32 v43, 8, v43
    v_lshl_add_u32 v43, v45, 5, v43
    v_lshl_add_u32 v{vR}, v44, 3, v43
    v_xor_b32 v{vR+1}, 32, v{vR}
    v_add_u32 v{vR+2}, 0x10000, v{vR}
    v_add_u32 v{vR+3}, 0x10000, v{vR+1}
    ''')
    a.wv('z'); a('s_barrier')
    arrive(a, 43, 44, 'QKV_AR')
    a.wv(); a('s_barrier')
    for T in range(2):
        for ks in range(16):
            for u in range(2):
                o = (32*ks + 4*u)*256
                a.ds(f'ds_read_b64_tr_b16 {vr((T*16+ks)*4+2*u,2,"a")}, v{vR+T+2*(o>>16)} offset:{o & 0xffff}')
            if ks % 4 == 3: a.wl()
    dbgpoll_wg(a, 43, 44, 'QKV_HP', 0x20000, hrdy=True)
    a(f'''
    s_lshl_b32 s36, s{S_WAVE}, 13
    v_add_u32 v{vA0}, s36, v{vL}          ; w*8192 + lane*16
    v_add_u32 v{vA1}, 4096, v{vA0}
    s_lshl_b32 s36, s{S_WAVE}, 11
    v_add_u32 v{vR}, s36, v{vL}           ; w*2048 + lane*16
    s_lshl_b32 s{sO}, s{S_TEAM}, 24
    s_lshl_b32 s37, s{S_RANK}, 13
    s_add_u32 s{sO}, s{sO}, s37
    s_sub_u32 s{sO}, s{sO}, {16*MB - WS_KC}
    s_mov_b32 s{sH}, {WS_H}
    s_mov_b32 s{sN}, 0
    ''')
    def hload():
        for q in range(8):
            a.vm(f'buffer_load_dwordx4 {vr(vH+4*q,4)}, v{vA0 if q < 4 else vA1}, s[4:7], s{sH} offen offset:{(q&3)*1024} sc1', 'h')
        a(f's_add_u32 s{sH}, s{sH}, 32768')
    def hwrite(buf):
        for q in range(8): a.ds(f'ds_write_b128 v{vA0}, {vr(vH+4*q,4)} offset:{buf*32768 + q*1024}', 'hw')
    hload(); a.wv(); hwrite(0); a.wl(); hload()
    a(f'v_mov_b32 v{vT}, 0')
    for i in range(3): a.vm(f'buffer_store_dword v{vT}, v{vF}, s[4:7], 0 offen sc1', 'x')
    a(f's_cmp_eq_u32 s{S_TEAM}, 2\ns_cbranch_scc1 QKV_V')
    for isv in (0, 1):
        L = 'QKV_V' if isv else 'QKV_K'
        a(L + ':')
        for par in range(2):
            a.vq = ['h']*8 + ['x']*3; a.dq = []
            a('s_barrier')
            NB = 8
            def rd(ks):
                for U in range(2):
                    a.ds(f'ds_read_b128 {vr(vB + (ks % NB)*8 + 4*U,4)}, v{vL} offset:{par*32768 + ks*2048 + U*1024}', 'f%d' % ks)
            for ks in range(4): rd(ks)
            for ks in range(16):
                a.wl('f%d' % ks)
                for T in range(2):
                    for U in range(2):
                        w = vr((T*16+ks)*4,4,'a'); h = vr(vB + (ks % NB)*8 + 4*U,4)
                        d = vr(vD + (8*T+4*U if isv else 8*U+4*T),4)
                        a(f'v_mfma_f32_16x16x32_bf16 {d}, {h if isv else w}, {w if isv else h}, {d if ks else 0}')
                if ks + 4 < 16: rd(ks+4)
                if ks == 11:
                    a.wv('h'); hwrite(par ^ 1)
            a.wl(); hload()
            for i in range(8): a(f'v_cvt_pk_bf16_f32 v{vO+i}, v{vD+2*i}, v{vD+2*i+1}')
            a(f'v_mov_b32 v{vT}, s{sN}')
            a.wv('x')
            a.vm(f'buffer_store_dword v{vT}, v{vF}, s[4:7], 0 offen sc1', 'x')
            a.vm(f'buffer_store_dwordx4 {vr(vO,4)}, v{vR}, s[4:7], s{sO} offen sc1', 'x')
            a.vm(f'buffer_store_dwordx4 {vr(vO+4,4)}, v{vR}, s[4:7], s{sO} offen offset:1024 sc1', 'x')
            a(f's_add_u32 s{sO}, s{sO}, 262144\ns_add_u32 s{sN}, s{sN}, 1')
        a(f'''
        s_cmp_lt_u32 s{sN}, 64
        s_cbranch_scc1 {L}
        v_mov_b32 v{vT}, 0xff
        s_waitcnt vmcnt(0)
        buffer_store_dword v{vT}, v{vF}, s[4:7], 0 offen sc1
        s_branch KEND
        ''')
```

```python
from common import *
vL, vFW, vFR, vKF, vTh, vPW, vPR, vHW, vXO, vQ_, vV_, vOW, vTR, vT, vT2 = range(1, 16)
vDel, vMask, vGa, vSb, vCb, vGb, vX2 = 16, 20, 28, 32, 36, 40, 44
vQ, vK, vV = 48, 64, 96
vKm, vVm, vS, vSm, vP, vB0, vB1, vXr = 112, 128, 132, 140, 144, 148, 150, 152
vF, vY = 160, 192
aWo, aW1, aW2 = 0, 128, 192
sX, sOut = 20, 24
sIt, sOQ, sOK, sOV, sOKM, sOX, sC, sCnt, sPY, sPZ, sH2, sT = 36, 37, 38, 39, 40, 41, 42, 43, 44, 45, 46, 47
L_OF, L_ST, L_T, L_TF, L_V = 0, 8192, 16384, 49152, 57344
dp = 'row_mask:0xf bank_mask:0xf'
W = 's[4:7]'

def xprologue(a, cfg):
    a(f'''
    XR:
    s_load_dwordx2 s[20:21], s[0:1], 0
    s_load_dwordx4 s[28:31], s[0:1], 80
    s_load_dwordx2 s[24:25], s[0:1], 96
    v_and_b32 v60, 63, v0          ; lane
    v_and_b32 v61, 15, v0          ; c
    v_bfe_u32 v62, v0, 4, 2        ; g
    v_lshlrev_b32 v{vL}, 4, v60
    s_sub_u32 s48, s{S_TEAM}, 4    ; k
    s_lshl_b32 s49, s48, 5
    s_add_u32 s49, s49, s{S_RANK}  ; xi
    s_lshl_b32 s36, s48, 11
    s_lshl_b32 s37, s{S_WAVE}, 7
    s_add_u32 s36, s36, s37
    s_add_u32 s36, s36, {WS_XF}
    v_lshlrev_b32 v63, 2, v60
    v_add_u32 v63, s36, v63
    v_mov_b32 v64, {OOB}
    v_cmp_gt_u32 vcc, 32, v60
    v_cndmask_b32 v{vFR}, v64, v63, vcc
    v_cmp_eq_u32 vcc, s{S_RANK}, v60
    v_cndmask_b32 v{vFW}, v64, v63, vcc
    v_mov_b32 v63, 0
    ''')
    for hop in range(3): a.vm(f'buffer_store_dword v63, v{vFW}, {W}, 0 offen offset:{hop*512} sc1', 'z')
    a(f'''
    s_waitcnt lgkmcnt(0)
    s_mov_b32 s22, {2*MB}
    s_mov_b32 s23, 0x00020000
    s_mov_b32 s26, {2*MB}
    s_mov_b32 s27, 0x00020000
    s_mov_b32 s12, s28
    s_mov_b32 s13, s29
    s_mov_b32 s14, 1024
    s_mov_b32 s15, 0x00020000
    s_mov_b32 s32, s30
    s_mov_b32 s33, s31
    s_mov_b32 s34, {512*6144}
    s_mov_b32 s35, 0x00020000
    v_lshrrev_b32 v63, 2, v0
    v_lshlrev_b32 v64, 4, v63
    s_mov_b32 s36, {8*6144}
    v_mul_lo_u32 v63, v63, s36
    v_and_b32 v65, 3, v0
    v_lshl_add_u32 v63, v65, 4, v63
    s_lshl_b32 s36, s49, 6
    s_cmp_lt_u32 s49, 96
    s_cselect_b32 s36, s36, {OOB}
    v_add_u32 v63, s36, v63
    ''')
    a.vm('buffer_load_dwordx4 v[68:71], v64, s[12:15], 0 offen', 'c')
    for q in range(8):
        a(f's_mov_b32 s36, {q*6144}')
        a.vm(f'buffer_load_dwordx4 {vr(72+4*q,4)}, v63, s[32:35], s36 offen', 'wm')
    a(f'''
    s_lshl_b32 s36, s49, 14
    s_lshl_b32 s37, s{S_WAVE}, 8
    s_add_u32 s36, s36, s37
    v_lshlrev_b32 v63, 10, v61
    v_lshl_add_u32 v63, v62, 4, v63
    v_add_u32 v63, s36, v63
    ''')
    for q in range(4): a.vm(f'buffer_load_dwordx4 {vr(112+4*q,4)}, v63, s[20:23], 0 offen offset:{64*q}', 'x')
    a.wv('c')
    a(f's_mov_b32 s36, {f32(-LOG2E)}\ns_mov_b32 s37, 0xffff0000')
    for q in range(8):
        a(f'v_lshlrev_b32 v{104+q}, 16, v{68+q//2}' if q % 2 == 0 else f'v_and_b32 v{104+q}, s37, v{68+q//2}')
    for q in range(8): a(f'v_mul_f32 v{128+q}, s36, v{104+q}')
    for q in range(8): a(f'v_exp_f32 v{128+q}, v{128+q}')
    for q in range(8): a(f'v_add_f32 v{128+q}, 1.0, v{128+q}')
    for q in range(8): a(f'v_rcp_f32 v{128+q}, v{128+q}')
    for q in range(8): a(f'v_mul_f32 v{104+q}, v{104+q}, v{128+q}')
    for q in range(4): a(f'v_cvt_pk_bf16_f32 v{68+q}, v{104+2*q}, v{105+2*q}')
    for q in range(8):
        a(f'v_lshlrev_b32 v{104+q}, 16, v{68+q//2}' if q % 2 == 0 else f'v_and_b32 v{104+q}, s37, v{68+q//2}')
    a.wv('wm')
    for q in range(8):
        for j in range(8):
            s = 72 + 4*q + j//2
            a(f'v_lshlrev_b32 v{136+j}, 16, v{s}' if j % 2 == 0 else f'v_and_b32 v{136+j}, s37, v{s}')
        for j in range(8):
            a(f'v_mul_f32 v{128+j}, v{104+q}, v{136+j}' if q == 0 else f'v_fmac_f32 v{128+j}, v{104+q}, v{136+j}')
    for r in (4, 8):
        for j in range(8): a(f'v_add_f32_dpp v{128+j}, v{128+j}, v{128+j} row_ror:{r} {dp}')
    a(f'''
    v_lshrrev_b32 v63, 4, v0
    v_lshlrev_b32 v63, 7, v63
    v_lshl_add_u32 v63, v61, 5, v63
    v_cmp_gt_u32 vcc, 4, v61
    s_mov_b64 exec, vcc
    ds_write_b128 v63, v[128:131] offset:{L_T}
    ds_write_b128 v63, v[132:135] offset:{L_T+16}
    s_mov_b64 exec, -1
    ''')
    a.wv()
    for i in range(32):
        s = 112 + i//2
        a(f'v_lshlrev_b32 v{160+i}, 16, v{s}' if i % 2 == 0 else f'v_and_b32 v{160+i}, s37, v{s}')
    a('v_add_f32 v64, v160, v161\nv_mul_f32 v65, v160, v160\nv_mul_f32 v66, v161, v161')
    for i in range(2, 32):
        a(f'v_add_f32 v64, v64, v{160+i}\nv_fmac_f32 v{65+(i&1)}, v{160+i}, v{160+i}')
    a('v_add_f32 v65, v65, v66')
    for p in ('16', '32'):
        a(f'''
        v_mov_b32 v66, v64
        v_mov_b32 v67, v65
        v_permlane{p}_swap_b32 v64, v66
        v_permlane{p}_swap_b32 v65, v67
        v_add_f32 v64, v64, v66
        v_add_f32 v65, v65, v67
        ''')
    a(f'''
    s_lshl_b32 s36, s{S_WAVE}, 3
    v_lshlrev_b32 v63, 5, v61
    v_add_u32 v66, s36, v63
    ds_write_b64 v66, v[64:65] offset:{L_ST}
    s_waitcnt lgkmcnt(0)
    s_barrier
    ds_read_b128 v[64:67], v63 offset:{L_ST}
    ds_read_b128 v[68:71], v63 offset:{L_ST+16}
    s_cmp_lg_u32 s{S_WAVE}, 0
    s_cbranch_scc1 XR_M1
    v_and_b32 v72, 31, v60
    v_lshrrev_b32 v73, 5, v60
    v_lshlrev_b32 v72, 2, v72
    v_lshl_add_u32 v73, v73, 10, v72
    ''')
    for r in range(8): a(f'ds_read_b32 v{80+r}, v73 offset:{L_T + r*128}')
    a('s_waitcnt lgkmcnt(0)')
    for r in range(1, 8): a(f'v_add_f32 v80, v80, v{80+r}')
    a(f'''
    v_mov_b32 v81, v80
    v_permlane32_swap_b32 v80, v81
    v_add_f32 v80, v80, v81
    v_cvt_pk_bf16_f32 v80, v80, v80
    v_lshlrev_b32 v80, 16, v80
    s_lshl_b32 s36, s49, 7
    s_add_u32 s36, s36, {WS_MOD}
    s_cmp_lt_u32 s49, 96
    s_cselect_b32 s36, s36, {OOB}
    v_add_u32 v72, s36, v72
    s_mov_b32 exec_hi, 0
    buffer_store_dword v80, v72, {W}, 0 offen sc1
    s_mov_b64 exec, -1
    s_waitcnt vmcnt(0)
    XR_M1:
    ''')
    arrive(a, 72, 73, 'XR_AR')
    a(f'''
    s_waitcnt lgkmcnt(0)
    v_add_f32 v64, v64, v66
    v_add_f32 v68, v68, v70
    v_add_f32 v65, v65, v67
    v_add_f32 v69, v69, v71
    v_add_f32 v64, v64, v68
    v_add_f32 v65, v65, v69
    v_mul_f32 v64, {f32(1/512)}, v64
    v_mul_f32 v65, {f32(1/512)}, v65
    v_fma_f32 v65, -v64, v64, v65
    v_max_f32 v65, 0, v65
    v_add_f32 v65, {f32(1e-5)}, v65
    v_rsq_f32 v65, v65
    ''')
    for i in range(32): a(f'v_sub_f32 v{160+i}, v{160+i}, v64')
    for i in range(32): a(f'v_mul_f32 v{160+i}, v{160+i}, v65')
    dbgpoll_wg(a, 72, 73, 'XR_BP', L_V)
    a(f'''
    s_lshl_b32 s36, s{S_WAVE}, 9
    s_add_u32 s36, s36, {WS_MOD}
    v_lshlrev_b32 v63, 5, v62
    v_add_u32 v63, s36, v63
    v_and_b32 v64, 1, v62
    v_lshlrev_b32 v64, 4, v64
    v_lshl_add_u32 v64, v61, 5, v64
    v_add_u32 v64, s36, v64
    s_movk_i32 s36, 0x1000
    s_movk_i32 s37, 0x2000
    ''')
    for q in range(4):
        for hh in range(2):
            a.vm(f'buffer_load_dwordx4 {vr(192+8*q+4*hh,4)}, v63, {W}, 0 offen offset:{128*q+16*hh} sc1', 'm%d' % q)
            a.vm(f'buffer_load_dwordx4 {vr(224+8*q+4*hh,4)}, v63, {W}, 0 offen offset:{2048+128*q+16*hh} sc1', 'm%d' % q)
    a.vm(f'buffer_load_dwordx4 {vr(vGa,4)}, v64, {W}, s36 offen sc1')
    a.vm(f'buffer_load_dwordx4 {vr(vSb,4)}, v64, {W}, s36 offen offset:2048 sc1')
    a.vm(f'buffer_load_dwordx4 {vr(vCb,4)}, v64, {W}, s37 offen sc1')
    a.vm(f'buffer_load_dwordx4 {vr(vGb,4)}, v64, {W}, s37 offen offset:2048 sc1')
    a(f'''
    s_lshr_b32 s36, s49, 1
    s_lshl_b32 s36, s36, 15
    s_and_b32 s37, s49, 1
    s_lshl_b32 s37, s37, 10
    s_add_u32 s36, s36, s37
    s_lshl_b32 s37, s{S_WAVE}, 13
    s_add_u32 s36, s36, s37
    v_add_u32 v63, s36, v{vL}
    s_movk_i32 s36, 0x1000
    ''')
    for q in range(4):
        a.wv('m%d' % q)
        for j in range(8):
            i = 8*q + j
            a(f'v_add_f32 v{224+i}, 1.0, v{224+i}\nv_fma_f32 v{160+i}, v{160+i}, v{224+i}, v{192+i}')
        for j in range(4): a(f'v_cvt_pk_bf16_f32 v{112+4*q+j}, v{160+8*q+2*j}, v{161+8*q+2*j}')
        a.vm(f'buffer_store_dwordx4 {vr(112+4*q,4)}, v63, {W}, {"s36" if q >= 2 else 0} offen offset:{(q&1)*2048} sc1')
    a('s_load_dwordx2 s[12:13], s[0:1], 40\ns_load_dwordx4 s[28:31], s[0:1], 64')
    a.wv(); a('s_barrier')
    arrive(a, 72, 73, 'XR_AH', off=D_HRDY-16)
    for i in range(4): a(f'v_add_f32 v{vCb+i}, 1.0, v{vCb+i}')
    a(f'''
    s_waitcnt lgkmcnt(0)
    s_mov_b32 s14, 0x400000
    s_mov_b32 s32, s30
    s_mov_b32 s33, s31
    s_mov_b32 s34, {1376*1024}
    s_mov_b32 s30, {1376*1024}
    s_mov_b32 s31, 0x00020000
    s_lshl_b32 s36, s{S_WAVE}, 8
    v_lshlrev_b32 v63, 4, v61
    v_add_u32 v63, s36, v63            ; 256w + 16c
    s_lshl_b32 s36, s{S_RANK}, 17
    v_lshl_add_u32 v64, v62, 12, v63
    v_add_u32 v64, s36, v64            ; Wo
    s_lshl_b32 s36, s{S_RANK}, 16
    v_lshl_add_u32 v65, v62, 14, v63
    v_add_u32 v65, s36, v65            ; w2
    s_mul_i32 s36, s{S_WAVE}, {128*2752}
    s_lshl_b32 s37, s{S_RANK}, 7
    v_lshl_add_u32 v66, v61, 3, s37    ; 128 rank + 8c
    v_cmp_gt_u32 vcc, 2752, v66
    v_mul_u32_u24 v67, {8*2752}, v62
    v_add3_u32 v66, v66, v67, s36
    v_mov_b32 v67, {OOB}
    v_cndmask_b32 v66, v67, v66, vcc   ; w1
    s_mov_b32 s50, 0x05040100
    s_mov_b32 s51, 0x07060302
    ''')
    R = 128
    for ks in range(4):
        for j in range(8):
            if j % 4 == 0: a(f's_mov_b32 s36, {(32*ks + 16*(j>>2))*1024}')
            a.vm(f'buffer_load_dwordx4 {vr(R+32*ks+4*j,4)}, v64, s[12:15], s36 offen offset:{(j&3)*1024}', 'wo%d' % ks)
    def perm(dst, lo, hi, half, k):
        t = 68 + (k & 7)
        a(f'v_perm_b32 v{t}, v{hi}, v{lo}, s{50+half}\nv_accvgpr_write_b32 a{dst}, v{t}')
    for ks in range(4):
        a.wv('wo%d' % ks)
        for T in range(8):
            for q in range(4): perm(aWo + (ks*8+T)*4 + q, R+32*ks+8*q+(T>>1), R+32*ks+8*q+4+(T>>1), T & 1, q)
    for ks in range(4):
        for j in range(8):
            a(f's_mov_b32 s36, {(32*ks + j)*2752}')
            a.vm(f'buffer_load_dwordx2 {vr(R+16*ks+2*j,2)}, v66, s[28:31], s36 offen', 'w1')
    for r in range(16):
        if r % 4 == 0: a(f's_mov_b32 s36, {(r>>2)*4096}')
        a.vm(f'buffer_load_dwordx4 {vr(R+64+4*r,4)}, v65, s[32:35], s36 offen offset:{(r&3)*1024}', 'w2')
    a(f'''
    v_lshrrev_b32 v64, 2, v60
    v_and_b32 v65, 3, v60
    v_lshlrev_b32 v65, 2, v65
    v_lshl_add_u32 v65, v64, 12, v65
    s_lshl_b32 s36, s{S_RANK}, 7
    s_add_u32 s36, s36, {WS_FL}
    v_add_u32 v65, s36, v65
    v_mov_b32 v67, {OOB}
    v_cmp_gt_u32 vcc, 16, v60
    v_cndmask_b32 v{vKF}, v67, v65, vcc
    s_lshl_b32 s36, s{S_WAVE}, 13
    s_lshl_b32 s37, s{S_RANK}, 8
    s_add_u32 s37, s36, s37
    v_lshlrev_b32 v64, 17, v62
    v_lshl_add_u32 v64, v61, 4, v64
    v_add_u32 v{vPW}, s37, v64
    s_lshl_b32 s37, s{S_RANK}, 15
    s_add_u32 s37, s36, s37
    v_add_u32 v{vPR}, s37, v{vL}
    v_add_u32 v{vTR}, s36, v{vL}       ; w*8192 + lane*16
    v_lshrrev_b32 v64, 2, v61
    v_lshlrev_b32 v64, 11, v64
    v_and_b32 v65, 3, v61
    v_lshl_add_u32 v64, v65, 8, v64
    v_lshl_add_u32 v64, v62, 3, v64
    s_lshr_b32 s37, s{S_RANK}, 4
    s_lshl_b32 s37, s37, 10
    s_add_u32 s36, s36, s37
    s_and_b32 s37, s{S_RANK}, 15
    s_lshl_b32 s37, s37, 4
    s_add_u32 s36, s36, s37
    v_add_u32 v64, s36, v64
    v_cmp_gt_u32 vcc, 32, v60
    v_cndmask_b32 v{vHW}, v67, v64, vcc
    v_and_b32 v64, 1, v62
    v_lshl_add_u32 v64, v64, 3, v63
    s_lshl_b32 s36, s{S_RANK}, 10
    v_add_u32 v{vXO}, s36, v64
    s_and_b32 s36, s{S_WAVE}, 1
    s_lshr_b32 s37, s{S_WAVE}, 1
    s_lshl_b32 s38, s36, 10
    v_add_u32 v{vQ_}, s38, v{vL}
    s_lshl_b32 s38, s37, 12
    v_add_u32 v{vV_}, s38, v{vL}
    s_lshl_b32 s38, s36, 12
    s_lshl_b32 s39, s37, 11
    s_add_u32 s38, s38, s39
    v_add_u32 v{vOW}, s38, v{vL}
    v_and_b32 v64, 1, v61
    v_lshlrev_b32 v64, 4, v64
    v_mov_b32 v65, 0x3f80
    v_lshlrev_b32 v64, v64, v65
    v_bfe_u32 v65, v61, 1, 2
    ''')
    for i in range(4): a(f'v_cmp_eq_u32 vcc, {i}, v65\nv_cndmask_b32 v{vDel+i}, 0, v64, vcc')
    a(f'''
    s_lshl_b32 s36, s36, 4
    v_lshlrev_b32 v64, 2, v62
    v_sub_u32 v64, v61, v64
    v_add_u32 v64, s36, v64
    v_mov_b32 v65, {f32(-1e30)}
    ''')
    for U in range(2):
        for i in range(4): a(f'v_cmp_gt_i32 vcc, {16*U+i}, v64\nv_cndmask_b32 v{vMask+4*U+i}, 0, v65, vcc')
    a(f'''
    s_add_u32 s36, s48, 1
    v_mov_b32 v64, s36
    v_cmp_lt_u32 vcc, 3, v60
    v_cndmask_b32 v{vTh}, 0, v64, vcc
    s_lshl_b32 s36, s48, 18
    s_lshl_b32 s37, s{S_RANK}, 13
    s_add_u32 s36, s36, s37
    s_add_u32 s{sOKM}, s36, {WS_KM}
    s_add_u32 s{sOV}, s36, {WS_VC}
    s_add_u32 s{sOK}, s36, {WS_KC}
    s_add_u32 s{sOQ}, s36, {WS_QC}
    s_lshl_b32 s{sOX}, s48, 15
    s_add_u32 s{sH2}, s{sOX}, {WS_H2}
    s_lshl_b32 s{sPY}, s48, 21
    s_add_u32 s{sPY}, s{sPY}, {WS_PY}
    s_add_u32 s{sPZ}, s{sPY}, {MB}
    s_mov_b32 s{sC}, {f32(128**-0.5*LOG2E)}
    s_mov_b32 s{sIt}, 0
    ''')
    a.wv('w1')
    for ks in range(4):
        for T in range(4):
            for q in range(4): perm(aW1 + (ks*4+T)*4 + q, R+16*ks+4*q+(T>>1), R+16*ks+4*q+2+(T>>1), T & 1, q)
    a.wv('w2')
    for s in range(2):
        for T in range(8):
            for q in range(4):
                rows = [4*(jj&3) + 2*s + (jj>>2) for jj in (2*q, 2*q+1)]
                perm(aW2 + (s*8+T)*4 + q, R+64+4*rows[0]+(T>>1), R+64+4*rows[1]+(T>>1), T & 1, q)
    a(f'v_mov_b32 v{vB0+1}, 0\nv_mov_b32 v{vB1}, 0')
    kpoll(a, 'XR_K0')
    qkvload(a)
    a(f'''
    s_add_u32 s{sT}, s48, 2
    v_mov_b32 v{vT}, s{sT}
    v_add_u32 v{vTh}, 4, v{vTh}
    v_cmp_gt_u32 vcc, 64, v{vL}
    v_cndmask_b32 v{vTh}, v{vTh}, v{vT}, vcc
    ''')

def kpoll(a, L):
    a(f'''
    s_mov_b32 s{sCnt}, 0
    s_mov_b64 exec, 0xffff
    s_branch {L}E
    {L}:
    s_sleep 2
    {L}E:
    buffer_load_dword v{vT}, v{vKF}, {W}, 0 offen sc1
    s_add_u32 s{sCnt}, s{sCnt}, 1
    s_cmp_gt_u32 s{sCnt}, {POLLMAX}
    s_cbranch_scc1 KEND
    s_waitcnt vmcnt(0)
    v_cmp_lt_u32 vcc, v{vT}, v{vTh}
    s_cbranch_vccnz {L}
    s_mov_b64 exec, -1
    ''')
    a.vq = []
def hpoll(a, L, hop, n):
    a(f'''
    s_mov_b32 s{sCnt}, 0
    {'s_mov_b32 exec_hi, 0' if n == 32 else 's_mov_b64 exec, ' + hex((1 << n) - 1)}
    {L}:
    buffer_load_dword v{vT}, v{vFR}, {W}, 0 offen offset:{hop*512} sc1
    s_add_u32 s{sCnt}, s{sCnt}, 1
    s_cmp_gt_u32 s{sCnt}, {POLLMAX}
    s_cbranch_scc1 KEND
    s_waitcnt vmcnt(0)
    v_cmp_gt_u32 vcc, s{sIt}, v{vT}
    s_cbranch_vccnz {L}
    s_mov_b64 exec, -1
    ''')
    a.vq = []
def hflag(a, hop, st):
    a(f'v_mov_b32 v{vT2}, s{sIt}')
    a.wv()
    a.vm(f'buffer_store_dword v{vT2}, v{vFW}, {W}, 0 offen offset:{hop*512} {st}')
def qkvload(a):
    for hh in range(2):
        if hh: a(f's_add_u32 s{sT}, s{sOQ}, 4096')
        for k in range(2): a.vm(f'buffer_load_dwordx4 {vr(vQ+8*hh+4*k,4)}, v{vQ_}, {W}, s{sT if hh else sOQ} offen offset:{2048*k} sc1', 'q')
    for hh in range(2):
        if hh: a(f's_add_u32 s{sT}, s{sOK}, 4096')
        for k in range(4): a.vm(f'buffer_load_dwordx4 {vr(vK+16*hh+4*k,4)}, v{vL}, {W}, s{sT if hh else sOK} offen offset:{1024*k} sc1', 'q')
    for k in range(4): a.vm(f'buffer_load_dwordx4 {vr(vV+4*k,4)}, v{vV_}, {W}, s{sOV} offen offset:{1024*k} sc1', 'q')
    for s in (sOQ, sOK, sOV): a(f's_add_u32 s{s}, s{s}, {MB}')

def mm(d, A, B, c, k=32): return f'v_mfma_f32_16x16x{k}_bf16 {d}, {A}, {B}, {c}'
def proj(a, aW, nk, sP, st):
    for U in range(2):
        for ks in range(nk):
            a.wl('F%d' % (U*nk+ks))
            for T in range(8):
                d = vr(vY+32*U+4*T,4)
                a(mm(d, vr(vF+(U*nk+ks)*4,4), vr(aW+(ks*8+T)*4,4,'a'), d if ks else 0))
                if U == 1 and (ks*8+T) >= 4 and (ks*8+T) < 12:
                    i = (ks*8+T-4) >> 1; hq = (ks*8+T-4) & 1
                    for q in (2*hq, 2*hq+1): a(f'v_cvt_pk_bf16_f32 v{vKm+4*i+q}, v{vY+8*q+i}, v{vY+8*q+4+i}')
                    if hq:
                        a(f's_add_u32 s{sT}, s{sP}, {i*32768}')
                        a.vm(f'buffer_store_dwordx4 {vr(vKm+4*i,4)}, v{vPW}, {W}, s{sT} offen {st}')
    for i in range(4):
        for q in range(4): a(f'v_cvt_pk_bf16_f32 v{vY+4*i+q}, v{vY+32+8*q+i}, v{vY+32+8*q+4+i}')
        a(f's_add_u32 s{sT}, s{sP}, {(16+i)*32768}')
        a.vm(f'buffer_store_dwordx4 {vr(vY+4*i,4)}, v{vPW}, {W}, s{sT} offen {st}')
def reduce(a, sP, nq):
    a(f's_add_u32 s{sT}, s{sP}, 4096')
    for q in range(nq): a.vm(f'buffer_load_dwordx4 {vr(vF+4*q,4)}, v{vPR}, {W}, s{sP if q < 4 else sT} offen offset:{(q&3)*1024} sc1', 'r%d' % q)
    for q in range(nq):
        a.wv('r%d' % q)
        d = vr(vS+4*(q&1),4)
        a(mm(d, vr(vDel,4), vr(vF+4*q,4), d if q >= 2 else 0))
    for i in range(4): a(f'v_add_f32 v{vS+i}, v{vS+i}, v{vS+4+i}')

def xloop(a, st, L, cfg):
    a(f'{L}LOOP:')
    a.vq = []; a.dq = []
    a(f's_add_u32 s{sIt}, s{sIt}, 1\ns_waitcnt vmcnt(0)')
    for ks in range(4):
        for U in range(2):
            d = vr(vS+4*U,4)
            a(mm(d, vr(vK+8*ks+4*U,4), vr(vQ+4*ks,4), d if ks else vr(vMask+4*U,4)))
    kpoll(a, L+'K')
    a(f's_add_u32 s{sT}, s{sOKM}, 4096')
    for ks in range(4): a.vm(f'buffer_load_dwordx4 {vr(vKm+4*ks,4)}, v{vL}, {W}, s{sOKM if ks < 2 else sT} offen offset:{(ks&1)*2048} sc1', 'k%d' % ks)
    for k in range(2): a.vm(f'buffer_load_dwordx2 {vr(vVm+2*k,2)}, v{vV_}, {W}, s{sOKM} offen offset:{1024+2048*k} sc1', 'vm')
    a.vm(f'buffer_load_dwordx2 {vr(vXr,2)}, v{vXO}, s[{sX}:{sX+3}], s{sOX} offen', 'x')
    m, t = vT, vT2
    a(f'''
    s_add_u32 s{sOKM}, s{sOKM}, {MB}
    v_add_u32 v{vTh}, 4, v{vTh}
    v_max3_f32 v{m}, v{vS}, v{vS+1}, v{vS+2}
    v_max3_f32 v{t}, v{vS+3}, v{vS+4}, v{vS+5}
    v_max3_f32 v{m}, v{m}, v{vS+6}, v{vS+7}
    v_max_f32 v{m}, v{m}, v{t}
    ''')
    for ks in range(4):
        a.wv('k%d' % ks)
        a(mm(vr(vSm,4), vr(vKm+4*ks,4), vr(vQ+4*ks,4), vr(vSm,4) if ks else 0))
    a(f'v_max3_f32 v{m}, v{m}, v{vSm}, v{vSm+2}')
    for p in ('16', '32'):
        a(f'v_mov_b32 v{t}, v{m}\nv_permlane{p}_swap_b32 v{m}, v{t}\nv_max_f32 v{m}, v{m}, v{t}')
    a(f'v_mul_f32 v{m}, s{sC}, v{m}')
    E = [vS+i for i in range(8)] + [vSm, vSm+2]
    for e in E: a(f'v_fma_f32 v{e}, v{e}, s{sC}, -v{m}')
    for e in E: a(f'v_exp_f32 v{e}, v{e}')
    for i in range(4): a(f'v_cvt_pk_bf16_f32 v{vP+i}, v{vS+2*i}, v{vS+2*i+1}')
    a(f'v_cvt_pk_bf16_f32 v{vB0}, v{vSm}, v{vSm+2}\nv_mov_b32 v{vB1+1}, v{vB0}')
    O = vY
    for k in range(4): a(mm(vr(O+4*k,4), vr(vV+4*k,4), vr(vP,4), 0))
    a.wv('vm')
    for k in range(4): a(mm(vr(O+4*k,4), vr(vVm+2*(k>>1),2), vr(vB1 if k & 1 else vB0,2), vr(O+4*k,4), 16))
    a(f'v_add_f32 v{m}, v{vS}, v{vS+1}\nv_add_f32 v{t}, v{vS+2}, v{vS+3}')
    for e in E[4:7]: a(f'v_add_f32 v{m}, v{m}, v{e}')
    for e in E[7:]: a(f'v_add_f32 v{t}, v{t}, v{e}')
    a(f'v_add_f32 v{m}, v{m}, v{t}')
    for p in ('16', '32'):
        a(f'v_mov_b32 v{t}, v{m}\nv_permlane{p}_swap_b32 v{m}, v{t}\nv_add_f32 v{m}, v{m}, v{t}')
    a(f'v_rcp_f32 v{m}, v{m}')
    for i in range(16): a(f'v_mul_f32 v{O+i}, v{O+i}, v{m}')
    for i in range(8): a(f'v_cvt_pk_bf16_f32 v{O+16+i}, v{O+2*i}, v{O+2*i+1}')
    a.ds(f'ds_write_b128 v{vOW}, {vr(O+16,4)} offset:{L_OF}')
    a.ds(f'ds_write_b128 v{vOW}, {vr(O+20,4)} offset:{L_OF+1024}')
    a.wl(); a('s_barrier')
    for f in range(8): a.ds(f'ds_read_b128 {vr(vF+4*f,4)}, v{vL} offset:{L_OF+f*1024}', 'F%d' % f)
    qkvload(a)
    proj(a, aWo, 4, sPY, st)
    hflag(a, 0, st)
    a(f'''
    v_lshlrev_b32 v{vX2}, 16, v{vXr}
    v_and_b32 v{vX2+1}, 0xffff0000, v{vXr}
    v_lshlrev_b32 v{vX2+2}, 16, v{vXr+1}
    v_and_b32 v{vX2+3}, 0xffff0000, v{vXr+1}
    ''')
    hpoll(a, L+'A', 0, 32)
    reduce(a, sPY, 8)
    for i in range(4): a(f'v_fmac_f32 v{vX2+i}, v{vGa+i}, v{vS+i}')
    s1, s2 = vS, vS+1
    a(f'''
    v_add_f32 v{s1}, v{vX2}, v{vX2+1}
    v_mul_f32 v{s2}, v{vX2}, v{vX2}
    v_add_f32 v{s1}, v{s1}, v{vX2+2}
    v_fmac_f32 v{s2}, v{vX2+1}, v{vX2+1}
    v_add_f32 v{s1}, v{s1}, v{vX2+3}
    v_fmac_f32 v{s2}, v{vX2+2}, v{vX2+2}
    v_fmac_f32 v{s2}, v{vX2+3}, v{vX2+3}
    ''')
    for r in (8, 4, 2, 1):
        a(f'v_add_f32_dpp v{s1}, v{s1}, v{s1} row_ror:{r} {dp}\nv_add_f32_dpp v{s2}, v{s2}, v{s2} row_ror:{r} {dp}')
    a(f'''
    v_lshrrev_b32 v{t}, 4, v0
    v_lshlrev_b32 v{t}, 3, v{t}
    v_mov_b32 v{m}, 0
    ''')
    a.ds(f'ds_write_b64 v{t}, {vr(s1,2)} offset:{L_ST}')
    a.wl(); a('s_barrier')
    for w in range(4): a.ds(f'ds_read_b128 {vr(vF+4*w,4)}, v{m} offset:{L_ST+32*w}')
    a.wl()
    for k in range(2):
        a(f'''
        v_add_f32 v{vF+k}, v{vF+k}, v{vF+2+k}
        v_add_f32 v{vF+4+k}, v{vF+4+k}, v{vF+6+k}
        v_add_f32 v{vF+8+k}, v{vF+8+k}, v{vF+10+k}
        v_add_f32 v{vF+12+k}, v{vF+12+k}, v{vF+14+k}
        ''')
    for k in range(2): a(f'v_add_f32 v{vF+k}, v{vF+k}, v{vF+4+k}\nv_add_f32 v{vF+8+k}, v{vF+8+k}, v{vF+12+k}')
    a(f'''
    v_add_f32 v{s1}, v{vF}, v{vF+8}
    v_add_f32 v{s2}, v{vF+1}, v{vF+9}
    v_mul_f32 v{s1}, {f32(1/512)}, v{s1}
    v_mul_f32 v{s2}, {f32(1/512)}, v{s2}
    v_fma_f32 v{s2}, -v{s1}, v{s1}, v{s2}
    v_max_f32 v{s2}, 0, v{s2}
    v_add_f32 v{s2}, {f32(1e-5)}, v{s2}
    v_rsq_f32 v{s2}, v{s2}
    ''')
    for i in range(4): a(f'v_sub_f32 v{vS+4+i}, v{vX2+i}, v{s1}')
    for i in range(4): a(f'v_mul_f32 v{vS+4+i}, v{vS+4+i}, v{s2}')
    for i in range(4): a(f'v_fma_f32 v{vS+4+i}, v{vS+4+i}, v{vCb+i}, v{vSb+i}')
    a(f'v_cvt_pk_bf16_f32 v{vS}, v{vS+4}, v{vS+5}\nv_cvt_pk_bf16_f32 v{vS+1}, v{vS+6}, v{vS+7}')
    a.vm(f'buffer_store_dwordx2 {vr(vS,2)}, v{vHW}, {W}, s{sH2} offen {st}')
    hflag(a, 1, st)
    a(f's_cmp_ge_u32 s{S_RANK}, 24\ns_cbranch_scc1 {L}NOF')
    hpoll(a, L+'B', 1, 32)
    a(f's_add_u32 s{sT}, s{sH2}, 4096')
    for f in range(8): a.vm(f'buffer_load_dwordx4 {vr(vF+4*f,4)}, v{vTR}, {W}, s{sH2 if f < 4 else sT} offen offset:{(f&3)*1024} sc1', 'h%d' % f)
    for ks in range(4):
        for U in range(2):
            a.wv('h%d' % (2*ks+U))
            for T in range(4):
                d = vr(vY+16*U+4*T,4)
                a(mm(d, vr(aW1+(ks*4+T)*4,4,'a'), vr(vF+(2*ks+U)*4,4), d if ks else 0))
    for f in range(8): a.ds(f'ds_write_b128 v{vTR}, {vr(vY+4*f,4)} offset:{L_T+f*1024}')
    a.wl(); a('s_barrier')
    for w in range(4):
        for k in range(2): a.ds(f'ds_read_b128 {vr(vF+8*w+4*k,4)}, v{vOW} offset:{L_T+w*8192+k*1024}', 't%d' % w)
    a(f's_mov_b32 s{sT}, {f32(-LOG2E)}')
    a.wl('t1')
    for i in range(8): a(f'v_add_f32 v{vF+i}, v{vF+i}, v{vF+8+i}')
    a.wl('t3')
    for i in range(8): a(f'v_add_f32 v{vF+16+i}, v{vF+16+i}, v{vF+24+i}')
    for i in range(8): a(f'v_add_f32 v{vF+i}, v{vF+i}, v{vF+16+i}')
    for i in range(8): a(f'v_mul_f32 v{vF+8+i}, s{sT}, v{vF+i}')
    for i in range(8): a(f'v_exp_f32 v{vF+8+i}, v{vF+8+i}')
    for i in range(8): a(f'v_add_f32 v{vF+8+i}, 1.0, v{vF+8+i}')
    for i in range(8): a(f'v_rcp_f32 v{vF+8+i}, v{vF+8+i}')
    for i in range(8): a(f'v_mul_f32 v{vF+i}, v{vF+i}, v{vF+8+i}')
    for i in range(4): a(f'v_cvt_pk_bf16_f32 v{vF+16+i}, v{vF+2*i}, v{vF+2*i+1}')
    a.ds(f'ds_write_b128 v{vOW}, {vr(vF+16,4)} offset:{L_TF}')
    a.wl(); a('s_barrier')
    for f in range(4): a.ds(f'ds_read_b128 {vr(vF+4*f,4)}, v{vL} offset:{L_TF+f*2048}', 'F%d' % f)
    proj(a, aW2, 2, sPZ, st)
    hflag(a, 2, st)
    a(f'{L}NOF:')
    hpoll(a, L+'C', 2, 24)
    reduce(a, sPZ, 6)
    for i in range(4): a(f'v_fmac_f32 v{vX2+i}, v{vGb+i}, v{vS+i}')
    a(f'''
    v_cvt_pk_bf16_f32 v{vS}, v{vX2}, v{vX2+1}
    v_cvt_pk_bf16_f32 v{vS+1}, v{vX2+2}, v{vX2+3}
    s_mov_b32 exec_hi, 0
    buffer_store_dwordx2 {vr(vS,2)}, v{vXO}, s[{sOut}:{sOut+3}], s{sOX} offen
    s_mov_b64 exec, -1
    s_add_u32 s{sOX}, s{sOX}, 0x20000
    s_cmp_lt_u32 s{sIt}, 16
    s_cbranch_scc1 {L}LOOP
    s_branch KEND
    ''')

def xrole(a, cfg):
    xprologue(a, cfg)
    a(f's_cmp_eq_u32 s{S_PURE}, 0\ns_cbranch_scc1 XS_LOOP')
    xloop(a, '', 'XP_', cfg)
    xloop(a, 'sc1', 'XS_', cfg)
```

```python
import sys
sys.path.insert(0,'gen')
from hl import *
from common import *
import main as mn
if __name__ == '__main__':
    local = not os.path.exists('/dev/kfd')
    cfgs = eval(sys.argv[1]) if len(sys.argv) > 1 else [dict()]
    if not local:
        from emu import *
        inp = inputs(0); E = mine(inp)
        bufs = []
        for k in ORDER:
            v = inp[k]
            arr = tobf(v) if torch.is_tensor(v) else np.array([v], np.int32)
            bufs.append(cl.DeviceBuffer.from_numpy(np.ascontiguousarray(arr)))
        wsn = np.random.randint(0, 65536, size=(81*MB//2,), dtype=np.uint16)
        ws = cl.DeviceBuffer(WS_BYTES); out = cl.DeviceBuffer(2*MB); dbg = cl.DeviceBuffer(256)
        def rd(off, n, dt=np.uint16):
            r = np.zeros(n, dt)
            cl._check(cl._hip.hipMemcpy(r.ctypes.data_as(ctypes.c_void_p), ctypes.c_void_p(ws.ptr + off), r.nbytes, 2)); return r
        def rel(x, y, n=64):
            e = (x - y).reshape(n, -1); y = y.reshape(n, -1)
            return np.sqrt((e**2).sum(1) / (y**2).sum(1))
        hl_ = E['h'].numpy().reshape(64,2,16,16,4,8).transpose(0,3,1,4,2,5)
        lk = {k: frombf((layV if k == 'V' else layK)(tobf(E[k]))) for k in 'KVQ'}
        tm = Timer()
    for i, c in enumerate(cfgs):
        co = build(wrap(mn.body(c), lds=160*1024, vgpr=512, acc=256, nptr=15), 'k_kernel', 15, f'full{i}')
        if local:
            print(cl.address_register_problem(co, 'k_kernel')); continue
        k = cl.AsmKernel(co, 'k_kernel')
        for rep in range(c.get('reps',1)):
            cl._check(cl._hip.hipMemcpy(ctypes.c_void_p(ws.ptr), wsn.ctypes.data_as(ctypes.c_void_p), wsn.nbytes, 1))
            memset(dbg, 0); memset(out, 0xff); sync()
            tm.start()
            k.launch((256+c.get('extra',0),1,1), (256,1,1), cl.pack_ptr_kernargs([b.ptr for b in bufs] + [out.ptr, dbg.ptr, ws.ptr]), 160*1024)
            t = tm.stop(); sync()
            d = dbg.to_numpy(np.uint32, (64,))
            o = frombf(out.to_numpy(np.uint16, (2048*512,)))
            ro = rel(o, E['out'].numpy())
            print(c, 'us %.1f' % t, 'out rel max %.4f' % np.nanmax(ro), 'nan', int(np.isnan(o).sum()))
            if c.get('chk', 1):
                print('  dbg', d[:8], d[16:25], d[32:41], d[48:52])
                print('  mod', rel(rd(WS_MOD, 3072, np.float32), E['mod'].numpy(), 6))
                S = [0,1,2,3,4,5,10,62,63]
                print('  h', np.round(rel(frombf(rd(WS_H, MB)), hl_.ravel())[S], 4))
                for nm, off in (('K',WS_KC),('V',WS_VC),('Q',WS_QC)): print('  '+nm, np.round(rel(frombf(rd(off, 8*MB)), lk[nm].ravel())[S], 4))
                km, vm = unlayKM(rd(WS_KM, 8*MB).reshape(64,32,4,2,64,8))
                print('  km', np.round(rel(frombf(km), E['km'].numpy())[S], 4), 'vm', np.round(rel(frombf(vm), E['vm'].numpy())[S], 4))
                h2l = E['h2'].numpy().reshape(64,2,16,16,4,8).transpose(0,3,1,4,2,5)[60:64]
                print('  h2(60..63)', np.round(rel(frombf(rd(WS_H2, 4*16384)), h2l.ravel(), 4), 4))
                print('  out', np.round(ro[S], 4))
                print('  flags', rd(WS_FL, 4096, np.uint32).reshape(4,32,32)[:,0,:4].tolist(), rd(WS_XF, 2048, np.uint32).reshape(4,4,4,32)[:,:3,0,0].tolist())
            if c.get('time'):
                T = rd(WS_TM, 16384, np.uint32).reshape(-1,16)
                print('  chain start', T[:3,0], 'n', T[0,2], 'cyc/step %.0f' % (T[0,1]/63.3))
                for r in range(2): print('     ex,q,kv,att,O,vm,h1,h2:', np.round(T[r,3:11]/63).astype(int), 'polls', np.round(T[r,11:13]/63,2))
                for nm, r in (('K',32),('V',64),('Q',96),('X4',128),('X5',160),('X7',224),('X7r31',255)): print('    ', nm, T[r])
            sys.stdout.flush()
        k.unload()
```

```python
from common import *
vX, vLr, vSmW, vOW, vL1, vL2, vPW, vPR, vMW, vIdx, vmE, vmO = range(12)
vSel0, vSel1, vDel = 12, 14, 16
vqT, vkT, vvm, vFl, vT = 20, 24, 28, 30, 31
vM, vSt, vK, vV = 32, 64, 80, 88
vAq, vAk, vAv = 104, 112, 120
sWq, sWk, sWv, sWo = 20, 24, 28, 32
sN, sCnt, sOK, sOV, sOKM, sOM, sP1, sC, sOdd, sTmp = 36, 37, 38, 39, 40, 41, 42, 43, 44, 46
sT0 = 48
sRdy, sFlK, sFlP = 56, 57, 58
L_M, L_SX, L_SM, L_O = 0, 8192, 16384, 17408
def slot(i): return ((i + 8) % 10) * 16384
O_LDS = [(0,0,0),(0,0,1),(0,1,2),(0,1,3)]
opreg = {}
def _alloc():
    lst = []
    for m in 'qkv':
        for kc in range(2,8):
            for T in range(2): lst.append((m,kc,T))
    for kc in range(2):
        for Q in range(2):
            for t in range(4):
                if (kc,Q,t) not in O_LDS: lst.append(('o',kc,Q,t))
    for i,k in enumerate(lst): opreg[k] = ('a', 8*i) if i < 32 else ('v', 128 + 8*(i-32))
_alloc()
chunks = [('o',kc,u,nu) for kc in range(2) for u in range(2) for nu in range(2)]
chunks += [(m,kc) for m in 'qkv' for kc in range(2,8)]
chunks += [(m,kc) for m in 'qkv' for kc in range(2)]
def pair_addr(key):
    if key == 'oA': a = 2*16384
    elif key == 'oB': a = 3*16384
    else: a = slot(chunks.index(key))
    return (vX, a) if a < 65536 else ((vL1, a-65536) if a < 131072 else (vL2, a-131072))

ABL = set(); OPT = set()
def stage(a, key):
    if 'nostage' in ABL: return
    b, o = pair_addr(key)
    for T in range(2):
        for h in range(2):
            a.ds('ds_read_b128 %s, v%d offset:%d' % (vr(vSt+8*T+4*h,4), b, o + T*8192 + h*1024), 'st')

def prologue(a, cfg):
    a('''
    CH:
    s_load_dwordx4 s[20:23], s[0:1], 16
    s_load_dwordx4 s[28:31], s[0:1], 32
    s_load_dwordx2 s[12:13], s[0:1], 8
    v_and_b32 v40, 63, v0          ; lane
    v_and_b32 v41, 15, v0          ; c
    v_bfe_u32 v42, v0, 4, 2        ; g
    ''')
    a(f'''
    v_lshrrev_b32 v45, 2, v41
    v_lshlrev_b32 v43, 13, v45
    v_lshl_add_u32 v43, v42, 11, v43
    v_and_b32 v44, 3, v40
    v_lshl_add_u32 v43, v44, 4, v43
    s_lshl_b32 s36, s{S_WAVE}, 16
    s_lshl_b32 s37, s{S_RANK}, 6
    s_add_u32 s36, s36, s37
    s_add_u32 s36, s36, {WS_P}
    v_add_u32 v{vPW}, s36, v43
    v_and_b32 v43, 1, v41
    v_lshlrev_b32 v43, 5, v43
    v_lshl_add_u32 v43, v45, 4, v43
    v_lshl_add_u32 v43, v42, 2, v43
    s_lshl_b32 s36, s{S_RANK}, 8
    s_lshl_b32 s37, s{S_WAVE}, 6
    s_add_u32 s36, s36, s37
    s_add_u32 s36, s36, {WS_M}
    v_add_u32 v43, s36, v43
    v_and_b32 v44, 10, v41
    v_cmp_eq_u32 vcc, 0, v44
    v_mov_b32 v44, {OOB}
    v_cndmask_b32 v{vMW}, v44, v43, vcc
    s_lshl_b32 s36, s{S_RANK}, 7
    s_lshl_b32 s37, s{S_WAVE}, 2
    s_add_u32 s36, s36, s37
    s_add_u32 s36, s36, {WS_FL}
    v_lshlrev_b32 v43, 12, v40
    v_sub_u32 v43, s36, v43
    v_cmp_gt_u32 vcc, 2, v40
    v_cndmask_b32 v{vFl}, v44, v43, vcc
    v_mov_b32 v112, 0
    v_mov_b32 v113, 0
    v_mov_b32 v114, 0
    v_mov_b32 v115, 0
    s_mov_b32 s{sP1}, 32768
    ''')
    a.vm('buffer_store_dwordx4 v[112:115], v%d, s[%d:%d], 0 offen sc1' % (vPW, S_WS, S_WS+3), 'z')
    a.vm('buffer_store_dwordx4 v[112:115], v%d, s[%d:%d], s%d offen sc1' % (vPW, S_WS, S_WS+3, sP1), 'z')
    a.vm('buffer_store_dword v112, v%d, s[%d:%d], 0 offen sc1' % (vMW, S_WS, S_WS+3), 'z')
    a.vm('buffer_store_dword v112, v%d, s[%d:%d], 0 offen sc1' % (vFl, S_WS, S_WS+3), 'z')
    a('''
    s_waitcnt lgkmcnt(0)
    s_mov_b32 s24, s22
    s_mov_b32 s25, s23
    s_mov_b32 s32, s30
    s_mov_b32 s33, s31
    ''')
    for s in (sWq, sWk, sWv, sWo): a('s_mov_b32 s%d, 0x400000\ns_mov_b32 s%d, 0x00020000' % (s+2, s+3))
    a('s_mov_b32 s14, 8192\ns_mov_b32 s15, 0x00020000')
    a(f'''
    s_lshl_b32 s36, s{S_WAVE}, 1
    v_lshrrev_b32 v43, 5, v40
    v_add_u32 v43, s36, v43         ; key = 2w + (l>>5)
    v_lshrrev_b32 v44, 1, v41
    v_xor_b32 v43, v43, v44
    v_lshlrev_b32 v43, 5, v43
    v_and_b32 v44, 1, v40
    v_lshl_add_u32 v43, v44, 4, v43
    v_lshl_add_u32 v43, v42, 13, v43
    s_lshl_b32 s36, s{S_WAVE}, 15
    s_lshl_b32 s37, s{S_RANK}, 8
    s_add_u32 s36, s36, s37
    v_add_u32 v96, s36, v43
    s_and_b32 s36, s{S_WAVE}, 1
    s_lshl_b32 s36, s36, 15
    s_lshr_b32 s37, s{S_WAVE}, 1
    s_lshl_b32 s37, s37, 12
    s_add_u32 s36, s36, s37
    s_lshl_b32 s37, s{S_RANK}, 17
    s_add_u32 s36, s36, s37
    v_lshlrev_b32 v43, 4, v40
    v_add_u32 v97, s36, v43
    v_xor_b32 v98, 16, v97
    v_xor_b32 v99, 0x80, v97
    v_add_u32 v99, {16384-2048}, v99
    v_xor_b32 v100, 16, v99
    s_lshl_b32 s38, s{S_WAVE}, 10     ; w*1024
    s_lshl_b32 s39, s{S_WAVE}, 12     ; w*4096
    ''')
    def dma(i):
        ch = chunks[i]
        if ch[0] == 'o':
            _, kc, u, nu = ch
            a('s_add_u32 m0, s39, %d' % slot(i))
            a('s_mov_b32 s40, %d' % ((64*kc + 8*u + 2*nu)*1024))
            for r in range(4):
                a.vm('buffer_load_dwordx4 v%d, s[%d:%d], s40 offen offset:%d lds' % (97+r, sWo, sWo+3, r*1024), i)
        else:
            s = {'q':sWq,'k':sWk,'v':sWv}[ch[0]]
            for m in range(4):
                a('s_add_u32 m0, s38, %d' % (slot(i) + m*4096))
                a('s_mov_b32 s40, %d' % (ch[1]*524288 + m*131072))
                a.vm('buffer_load_dwordx4 v96, s[%d:%d], s40 offen lds' % (s, s+3), i)
    for i in range(9): dma(i)
    a(f'''
    v_lshlrev_b32 v{vLr}, 4, v40
    s_lshl_b32 s36, s{S_WAVE}, 11
    v_add_u32 v{vX}, s36, v{vLr}
    v_add_u32 v{vL1}, 0x10000, v{vX}
    v_add_u32 v{vL2}, 0x20000, v{vX}
    s_lshl_b32 s36, s{S_WAVE}, 2
    v_add_u32 v{vSmW}, s36, v{vLr}
    s_lshr_b32 s36, s{S_WAVE}, 1
    s_lshl_b32 s36, s36, 10
    s_and_b32 s37, s{S_WAVE}, 1
    s_lshl_b32 s37, s37, 3
    s_add_u32 s36, s36, s37
    v_add_u32 v{vOW}, s36, v{vLr}
    v_and_b32 v44, 3, v40
    ; P read: j*8192 + w*2048 + ((l&3)+4g)*64 + ((l>>2)&3)*16
    v_lshl_add_u32 v43, v42, 2, v44
    v_lshlrev_b32 v43, 6, v43
    v_lshrrev_b32 v45, 2, v41
    v_lshl_add_u32 v43, v45, 4, v43
    s_lshl_b32 s36, s{S_RANK}, 13
    s_lshl_b32 s37, s{S_WAVE}, 11
    s_add_u32 s36, s36, s37
    s_add_u32 s36, s36, {WS_P}
    v_add_u32 v{vPR}, s36, v43
    ; masks
    v_and_b32 v43, 1, v41
    v_sub_u32 v{vmO}, 0, v43
    v_not_b32 v{vmE}, v{vmO}
    v_and_b32 v{vIdx}, 0xaaaa, v{vmO}
    v_add_u32 v{vIdx}, 0x4444, v{vIdx}
    s_mov_b32 s{sOdd}, 0xaaaaaaaa
    s_mov_b32 s{sOdd+1}, 0xaaaaaaaa
    v_lshrrev_b32 v43, 2, v41
    v_cmp_eq_u32 vcc, v43, v42
    v_bfe_u32 v43, v41, 1, 1
    v_lshlrev_b32 v43, 4, v43
    v_mov_b32 v44, 0x3f80
    v_lshlrev_b32 v43, v43, v44
    v_cndmask_b32 v{vSel0}, 0, v43, vcc
    v_mov_b32 v{vSel0+1}, 0
    v_mov_b32 v{vSel1}, 0
    v_mov_b32 v{vSel1+1}, v{vSel0}
    v_and_b32 v43, 1, v41
    v_lshlrev_b32 v43, 4, v43
    v_lshlrev_b32 v43, v43, v44
    v_bfe_u32 v45, v41, 1, 2
    ''')
    for i in range(4):
        a('v_cmp_eq_u32 vcc, %d, v45\nv_cndmask_b32 v%d, 0, v43, vcc' % (i, vDel+i))
    a(f'''
    v_lshrrev_b32 v43, 2, v41        ; r
    v_and_b32 v44, 3, v41            ; cc
    v_and_b32 v45, 1, v42            ; g&1
    v_lshrrev_b32 v46, 1, v42        ; g>>1
    v_lshl_add_u32 v47, v43, 1, v45  ; key = 4(r>>1)+2(r&1)+(g&1) = 2r + (g&1)
    v_lshlrev_b32 v48, 9, v47
    v_lshl_add_u32 v48, v46, 12, v48
    s_lshl_b32 s36, s{S_WAVE}, 1
    v_xor_b32 v47, s36, v47
    v_lshl_add_u32 v48, v47, 5, v48
    v_lshl_add_u32 v101, v44, 3, v48
    v_xor_b32 v102, 32, v101
    v_lshl_add_u32 v47, v42, 2, v43  ; row = 4g + r
    v_lshlrev_b32 v47, 10, v47
    v_lshl_add_u32 v47, v44, 5, v47
    s_lshl_b32 s36, s{S_WAVE}, 8
    v_add_u32 v47, s36, v47
    v_and_b32 v48, 1, v43
    v_lshl_add_u32 v47, v48, 4, v47
    v_lshrrev_b32 v48, 1, v43
    v_lshl_add_u32 v104, v48, 7, v47
    v_xor_b32 v105, 16, v104
    v_xor_b32 v106, 0x80, v104
    v_xor_b32 v107, 0x90, v104
    ''')
    a(f'''
    v_lshrrev_b32 v43, 1, v41
    v_lshlrev_b32 v43, 10, v43
    v_lshl_add_u32 v43, v42, 5, v43
    v_and_b32 v44, 1, v41
    v_lshl_add_u32 v43, v44, 4, v43
    s_lshl_b32 s36, s{S_WAVE}, 8
    v_add_u32 v103, s36, v43
    ''')
    def rd_base(i, regs):
        s = slot(i)
        hi = s // 65536 * 65536
        if hi == 0: return regs, s
        t = [108 + k for k in range(len(regs))]
        for x, y in zip(t, regs): a('v_add_u32 v%d, %d, v%d' % (x, hi, y))
        return t, s - hi
    def writeback(i):
        b, o = pair_addr(chunks[i]); base = 64 + 16*(i & 1)
        for T in range(2):
            for h in range(2):
                a.ds('ds_write_b128 v%d, %s offset:%d' % (b, vr(base+8*T+4*h,4), o + T*8192 + h*1024))
    a.wv('z'); a('s_barrier')
    arrive(a, 112, 113, 'CH_AR', chain=True)
    for i in range(32):
        a.wv(i); a.wl(); a('s_barrier')
        if i + 9 < 32: dma(i+9)
        if i >= 27: writeback(i-1)
        ch = chunks[i]
        if ch[0] == 'o':
            _, kc, u, nu = ch
            regs, o = rd_base(i, [104,105,106,107])
            for Q in range(2):
                for t in range(4):
                    if (kc,Q,t) in O_LDS: p, b = 'v', 32 + 8*O_LDS.index((kc,Q,t))
                    else: p, b = opreg[('o',kc,Q,t)]
                    a.ds('ds_read_b64_tr_b16 %s, v%d offset:%d' % (vr(b+4*u+2*nu,2,p), regs[2*Q+(t>>1)], o + 8*(t&1)))
        else:
            regs, o = rd_base(i, [101,102])
            for T in range(2):
                if i >= 26: p, b = 'v', 64 + 16*(i & 1) + 8*T
                else: p, b = opreg[(ch[0],ch[1],T)]
                for u in range(2):
                    for nu in range(2):
                        a.ds('ds_read_b64_tr_b16 %s, v%d offset:%d' % (vr(b+4*u+2*nu,2,p), regs[T], o + (32*u+nu)*256))
        if i == 23:
            a.vm('buffer_load_dwordx4 v[116:119], v103, s[12:15], 0 offen', 'm0')
            a.vm('buffer_load_dwordx4 v[120:123], v103, s[12:15], 0 offen offset:128', 'm0')
    a.wl(); a('s_barrier')
    writeback(31)
    for k in range(4):
        for h in range(2):
            a.ds('ds_write_b128 v%d, %s offset:%d' % (vX, vr(32+8*k+4*h,4), 32768 + (k>>1)*16384 + (k&1)*8192 + h*1024))
    a.wv(); a.wl()
    a('s_mov_b32 s36, 0x05040100\ns_mov_b32 s37, 0x07060302')
    for k in range(2):
        s = 116 + 4*k; d = vM + 4*k
        a(f'''
        v_perm_b32 v{d}, v{s+2}, v{s}, s36
        v_perm_b32 v{d+1}, v{s+2}, v{s}, s37
        v_perm_b32 v{d+2}, v{s+3}, v{s+1}, s36
        v_perm_b32 v{d+3}, v{s+3}, v{s+1}, s37
        ''')
    stage(a, ('q',0))
    a(f'''
    s_lshl_b32 s36, s{S_RANK}, 13
    s_add_u32 s{sOK}, s36, {WS_KC}
    s_add_u32 s{sOV}, s36, {WS_VC}
    s_add_u32 s{sOKM}, s36, {WS_KM - 262144}
    s_mov_b32 s{sOM}, {WS_M}
    s_mov_b32 s{sC}, {f32(128**-0.5*LOG2E)}
    s_mov_b32 s{sN}, 0
    ''')
    for r in range(vAq, 128, 2): a('v_mov_b64 v[%d:%d], 0' % (r, r+1))
    a.wl()
    tabs(a, cfg, 12)
    dbgpoll(a, vqT, vqT+1, 'CH_BP')
    a(f'''
    s_cmp_eq_u32 s98, 0
    s_cbranch_scc1 FALLBACK
    s_movk_i32 s{sFlP}, 0x2000
    s_mov_b32 s{sN}, -1
    ''')
    rdy(a, 'CH_R0')
    tabs(a, cfg, 13)
    a(f's_mov_b32 s{sN}, 0')
    a.vm(f'buffer_load_dwordx4 {vr(vK,4)}, v{vX}, s[4:7], s{sOK} offen sc1')
    a.vm(f'buffer_load_dwordx4 {vr(vK+4,4)}, v{vX}, s[4:7], s{sOK} offen offset:1024 sc1')
    a.vm(f'buffer_load_dwordx4 {vr(vV,4)}, v{vX}, s[4:7], s{sOV} offen sc1')
    a.vm(f'buffer_load_dwordx4 {vr(vV+4,4)}, v{vX}, s[4:7], s{sOV} offen offset:1024 sc1')
    a.wv(); a.wl()

def rdy(a, L):
    a(f'''
    s_mov_b32 s{sCnt}, 0
    {L}:
    buffer_load_dword v{vqT}, v{vFl}, s[4:7], s{sFlP} offen sc1
    s_add_u32 s{sCnt}, s{sCnt}, 1
    s_cmp_gt_u32 s{sCnt}, {POLLMAX}
    s_cbranch_scc1 KEND
    s_waitcnt vmcnt(0)
    v_readlane_b32 s{sRdy}, v{vqT}, 0
    v_readlane_b32 s{sFlK}, v{vqT}, 1
    s_min_u32 s{sRdy}, s{sRdy}, s{sFlK}
    s_sub_u32 s{sRdy}, s{sRdy}, 2
    s_cmp_lt_i32 s{sRdy}, s{sN}
    s_cbranch_scc1 {L}
    ''')

def stamp(a, cfg, k):
    if k not in cfg.get('stamps', ()): return
    a.wl(); a('s_memtime s[62:63]\ns_waitcnt lgkmcnt(0)\ns_sub_u32 s80, s62, s81\ns_mov_b32 s81, s62\ns_add_u32 s%d, s%d, s80' % (64+k, 64+k))

def smf(a, m, kc, T):
    if 'no'+m in ABL: return
    acc = {'q':vAq,'k':vAk,'v':vAv}[m] + 4*T
    if kc < 2: p, b = 'v', vSt + 8*T
    else: p, b = opreg[(m,kc,T)]
    a('v_smfmac_f32_16x16x64_bf16 %s, %s, %s, v%d' % (vr(acc,4), vr(vM+4*kc,4), vr(b,8,p), vIdx))

def step(a, par, st, cfg, L):
    ph = par ^ 1
    V = vV + 8*par; Vn = vV + 8*(par^1)
    W = 's[4:7]'
    a.dq = []; a.vq = []
    if cfg.get('trace'): a('s_memtime s[62:63]')
    a.ds(f'ds_write_b128 v{vX}, {vr(vM,4)} offset:{L_M}')
    a.ds(f'ds_write_b128 v{vX}, {vr(vM+4,4)} offset:{L_M+1024}')
    a(f's_add_u32 s{sOV}, s{sOV}, 262144')
    a(f's_add_u32 s{sOK}, s{sOK}, 262144')
    a.wl(); a('s_barrier')
    stamp(a, cfg, 0)
    qo = [0,2,3,4,5,6,1,7]
    for kc in qo: a.ds(f'ds_read_b128 {vr(vM+4*kc,4)}, v{vLr} offset:{L_M+kc*1024}', 'M%d'%kc)
    a(f's_cmp_lt_i32 s{sRdy}, s{sN}\ns_cbranch_scc1 {L}RS\n{L}RB:\nv_mov_b32 v{vT}, s{sN}')
    if 'novm' not in ABL and 'nopub' not in ABL:
        a.vm(f'buffer_store_dwordx4 {vr(vkT,4)}, v{vX}, {W}, s{sOKM} offen sc1', 'pub')
        a.vm(f'buffer_store_dwordx2 {vr(vvm,2)}, v{vX}, {W}, s{sOKM} offen offset:1024 sc1', 'pub')
        a.vm(f'buffer_store_dword v{vT}, v{vFl}, {W}, 0 offen sc1', 'pub')
        a.vm(f'buffer_load_dword v{vT}, v{vFl}, {W}, s{sFlP} offen sc1', 'fl')
    if 'novm' not in ABL and 'noV' not in ABL:
        a.vm(f'buffer_load_dwordx4 {vr(Vn,4)}, v{vX}, {W}, s{sOV} offen sc1', 'V')
        a.vm(f'buffer_load_dwordx4 {vr(Vn+4,4)}, v{vX}, {W}, s{sOV} offen offset:1024 sc1', 'V')
    a(f's_add_u32 s{sOKM}, s{sOKM}, 262144')
    if cfg.get('trace'):
        a(f's_lshl_b32 s63, s{sN}, 12\ns_add_u32 s63, s63, {WS_TM + 65536 - WS_FL}\nv_mov_b32 v{vqT}, s62')
        a('s_mov_b64 exec, 1'); a.vm(f'buffer_store_dword v{vqT}, v{vFl}, {W}, s63 offen'); a('s_mov_b64 exec, -1')
    for i, kc in enumerate(qo):
        a.wl('M%d'%kc)
        if kc == 1: a.wl('st')
        smf(a,'q',kc,0); smf(a,'q',kc,1)
        if kc == 0: stage(a, ('q',1))
        if kc == 1: stage(a, ('k',0))
    stamp(a, cfg, 1)
    pk = vkT
    def sums(acc, dst):
        return [f'v_add_f32 v{acc}, v{acc}, v{acc+1}', f'v_add_f32 v{acc+2}, v{acc+2}, v{acc+3}',
                f'v_add_f32 v{acc+4}, v{acc+4}, v{acc+5}', f'v_add_f32 v{acc+6}, v{acc+6}, v{acc+7}',
                f'v_cvt_pk_bf16_f32 v{dst}, v{acc}, v{acc+2}', f'v_cvt_pk_bf16_f32 v{dst+1}, v{acc+4}, v{acc+6}']
    def transp(acc, T):
        a(f'v_mfma_f32_16x16x16_bf16 {vr(acc+4*T,4)}, {vr(pk,2)}, {vr(vSel0+2*T,2)}, 0')
    def cvt4(acc, dst):
        return [f'v_cvt_pk_bf16_f32 v{dst+i}, v{acc+2*i}, v{acc+2*i+1}' for i in range(4)]
    s = sums(vAq, pk); c = cvt4(vAq, vqT)
    smf(a,'k',2,0); smf(a,'k',2,1); smf(a,'k',3,0)
    a(s[0]); a(s[1]); smf(a,'k',3,1); a(s[2]); a(s[3])
    a.wl('st'); smf(a,'k',0,0); a(s[4]); a(s[5]); smf(a,'k',0,1)
    stage(a, ('k',1))
    transp(vAq,0); transp(vAq,1)
    smf(a,'k',4,0); smf(a,'k',4,1); smf(a,'k',5,0)
    a(c[0]); a(c[1]); smf(a,'k',5,1); a(c[2]); a(c[3])
    smf(a,'k',6,0)
    a(f'v_mfma_f32_16x16x32_bf16 {vr(vAq,4)}, {vr(vK,4)}, {vr(vqT,4)}, 0')
    a(f'v_mfma_f32_16x16x32_bf16 {vr(vAq+4,4)}, {vr(vK+4,4)}, {vr(vqT,4)}, 0')
    smf(a,'k',6,1)
    a.wl('st'); smf(a,'k',1,0); smf(a,'k',1,1)
    stage(a, ('v',0))
    smf(a,'k',7,0)
    for r in range(2): a(f'v_cndmask_b32 v{vAq+r}, v{vAq+r}, v{vAq+4+r}, s[{sOdd}:{sOdd+1}]')
    smf(a,'k',7,1)
    for r in range(2,4): a(f'v_cndmask_b32 v{vAq+r}, v{vAq+r}, v{vAq+4+r}, s[{sOdd}:{sOdd+1}]')
    s = sums(vAk, pk); c = cvt4(vAk, vkT)
    smf(a,'v',2,0)
    a.ds(f'ds_write_b128 v{vX}, {vr(vAq,4)} offset:{L_SX}', 'sx')
    smf(a,'v',2,1)
    a(s[0]); a(s[1]); smf(a,'v',3,0); a(s[2]); a(s[3]); a(s[4]); a(s[5])
    smf(a,'v',3,1)
    transp(vAk,0); transp(vAk,1)
    a.wl(); a('s_barrier')
    smf(a,'v',0,0)
    SX = [vAq, vAq+4, vK, vK+4]
    for w in range(2): a.ds(f'ds_read_b128 {vr(SX[w],4)}, v{vLr} offset:{L_SX+w*2048}', 'x%d'%w)
    smf(a,'v',0,1)
    for w in range(2,4): a.ds(f'ds_read_b128 {vr(SX[w],4)}, v{vLr} offset:{L_SX+w*2048}', 'x%d'%w)
    a(c[0]); a(c[1]); a(c[2]); a(c[3])
    smf(a,'v',4,0)
    a(f'v_mfma_f32_16x16x32_bf16 {vr(vAk,4)}, {vr(vkT,4)}, {vr(vqT,4)}, 0')
    stage(a, ('v',1))
    smf(a,'v',4,1)
    a.wl('x1')
    for r in range(2): a(f'v_add_f32 v{vAq+r}, v{vAq+r}, v{vAq+4+r}')
    smf(a,'v',5,0)
    a(f'v_cndmask_b32 v{vAk}, v{vAk}, v{vAk+2}, s[{sOdd}:{sOdd+1}]')
    a.ds(f'ds_write_b32 v{vSmW}, v{vAk} offset:{L_SM}', 'sm')
    smf(a,'v',5,1)
    for r in range(2,4): a(f'v_add_f32 v{vAq+r}, v{vAq+r}, v{vAq+4+r}')
    smf(a,'v',6,0)
    a.wl('x3')
    for r in range(2): a(f'v_add_f32 v{vK+r}, v{vK+r}, v{vK+4+r}')
    smf(a,'v',6,1)
    a.wl(); a('s_barrier')
    a.ds(f'ds_read_b128 {vr(vAk+4,4)}, v{vLr} offset:{L_SM}', 'sm')
    smf(a,'v',1,0)
    for r in range(2,4): a(f'v_add_f32 v{vK+r}, v{vK+r}, v{vK+4+r}')
    smf(a,'v',1,1)
    for r in range(2): a(f'v_add_f32 v{vAq+r}, v{vAq+r}, v{vK+r}')
    smf(a,'v',7,0)
    for r in range(2,4): a(f'v_add_f32 v{vAq+r}, v{vAq+r}, v{vK+r}')
    smf(a,'v',7,1)
    stamp(a, cfg, 2)
    m, t, sm = vAq+4, vAq+5, vAk+4
    a(f'v_max3_f32 v{m}, v{vAq}, v{vAq+1}, v{vAq+2}')
    a.wl('sm')
    a(f'v_add_f32 v{sm}, v{sm}, v{sm+1}\nv_add_f32 v{sm+2}, v{sm+2}, v{sm+3}\nv_add_f32 v{sm}, v{sm}, v{sm+2}')
    a(f'v_max3_f32 v{m}, v{m}, v{vAq+3}, v{sm}')
    if 'novm' not in ABL and 'noK' not in ABL:
        a.vm(f'buffer_load_dwordx4 {vr(vK,4)}, v{vX}, {W}, s{sOK} offen sc1', 'K')
        a.vm(f'buffer_load_dwordx4 {vr(vK+4,4)}, v{vX}, {W}, s{sOK} offen offset:1024 sc1', 'K')
    a(f'v_max_f32_dpp v{m}, v{m}, v{m} quad_perm:[1,0,3,2] row_mask:0xf bank_mask:0xf')
    s = sums(vAv, vvm)
    a(f'v_mov_b32 v{t}, v{m}'); a(s[0]); a(s[1])
    a(f'v_permlane16_swap_b32 v{m}, v{t}\nv_max_f32 v{m}, v{m}, v{t}')
    a(f'v_mov_b32 v{t}, v{m}'); a(s[2]); a(s[3])
    a(f'v_permlane32_swap_b32 v{m}, v{t}\nv_max_f32 v{m}, v{m}, v{t}')
    a(f'v_mul_f32 v{m}, s{sC}, v{m}')
    for r in range(4): a(f'v_fma_f32 v{vAq+r}, v{vAq+r}, s{sC}, -v{m}')
    a(f'v_fma_f32 v{sm}, v{sm}, s{sC}, -v{m}')
    for r in range(4): a(f'v_exp_f32 v{vAq+r}, v{vAq+r}')
    a(f'v_exp_f32 v{sm}, v{sm}')
    P0, B0, B1, Bm, Do = vAk, vM, vM+4, vM+8, vM+12
    a(f'v_cvt_pk_bf16_f32 v{P0}, v{vAq}, v{vAq+1}\nv_cvt_pk_bf16_f32 v{P0+1}, v{vAq+2}, v{vAq+3}')
    a(s[4]); a(s[5])
    if par == 1:
        a(f's_cmp_eq_u32 s{sN}, 63\ns_cbranch_scc1 {L}TAIL')
    dp = 'row_mask:0xf bank_mask:0xf'
    def bmask(B, mk):
        for i in range(4):
            a(f'v_and_b32_dpp v{B+i}, v{P0+(i&1)}, v{mk} quad_perm:{"[0,0,2,2]" if i<2 else "[1,1,3,3]"} {dp}')
    bmask(B0, vmE)
    a(f'v_mov_b32_dpp v{P0+2}, v{sm} quad_perm:[0,0,2,2] {dp}\nv_mov_b32_dpp v{P0+3}, v{sm} quad_perm:[1,1,3,3] {dp}')
    a(f'v_mfma_f32_16x16x32_bf16 {vr(Do,4)}, {vr(V,4)}, {vr(B0,4)}, 0')
    bmask(B1, vmO)
    a(f'v_cvt_pk_bf16_f32 v{P0+2}, v{P0+2}, v{P0+3}')
    a(f'v_add_f32 v{m}, v{vAq}, v{vAq+1}')
    a(f'v_mfma_f32_16x16x32_bf16 {vr(Do,4)}, {vr(V+4,4)}, {vr(B1,4)}, {vr(Do,4)}')
    a(f'v_and_b32 v{Bm}, v{P0+2}, v{vmE}\nv_and_b32 v{Bm+1}, v{P0+2}, v{vmO}')
    a(f'v_add_f32 v{t}, v{vAq+2}, v{vAq+3}\nv_add_f32 v{m}, v{m}, v{sm}')
    a(f'v_mfma_f32_16x16x16_bf16 {vr(Do,4)}, {vr(vvm,2)}, {vr(Bm,2)}, {vr(Do,4)}')
    a(f'v_add_f32 v{m}, v{m}, v{t}')
    stage(a, 'oA')
    a(f'v_add_f32_dpp v{m}, v{m}, v{m} quad_perm:[1,0,3,2] {dp}')
    z = ['v_mov_b64 v[%d:%d], 0' % (r, r+1) for r in list(range(vM+16, vM+32, 2)) + list(range(vM, vM+16, 2))]
    a(f'v_mov_b32 v{t}, v{m}'); a(z[0]); a(z[1])
    a(f'v_permlane16_swap_b32 v{m}, v{t}\nv_add_f32 v{m}, v{m}, v{t}')
    a(f'v_mov_b32 v{t}, v{m}'); a(z[2]); a(z[3])
    a(f'v_permlane32_swap_b32 v{m}, v{t}\nv_add_f32 v{m}, v{m}, v{t}')
    a(f'v_rcp_f32 v{m}, v{m}'); a(z[4])
    for r in range(4): a(f'v_mul_f32 v{Do+r}, v{Do+r}, v{m}')
    a(f'v_cvt_pk_bf16_f32 v{P0}, v{Do}, v{Do+1}\nv_cvt_pk_bf16_f32 v{P0+1}, v{Do+2}, v{Do+3}')
    a.ds(f'ds_write_b64 v{vOW}, {vr(P0,2)} offset:{L_O}')
    for x in z[5:10]: a(x)
    a.wl(); a('s_barrier')
    OA = vAv
    a.ds(f'ds_read_b128 {vr(OA,4)}, v{vLr} offset:{L_O}', 'o0')
    a.ds(f'ds_read_b128 {vr(OA+4,4)}, v{vLr} offset:{L_O+1024}', 'o1')
    for x in z[10:]: a(x)
    stamp(a, cfg, 3)
    def omf(kc, Q, tau):
        if 'noo' in ABL: return
        if (kc,Q,tau) in O_LDS: p, b = 'v', vSt + 8*(tau & 1)
        else: p, b = opreg[('o',kc,Q,tau)]
        a('v_smfmac_f32_16x16x64_bf16 %s, %s, %s, v%d' % (vr(vM+16*Q+4*tau,4), vr(OA+4*kc,4), vr(b,8,p), vIdx))
    def fin(Q, tau):
        acc = vM+16*Q+4*tau; d = vAq+4*Q+tau
        r = [f'v_add_f32 v{acc}, v{acc}, v{acc+1}', f'v_add_f32 v{acc+2}, v{acc+2}, v{acc+3}', f'v_cvt_pk_bf16_f32 v{d}, v{acc}, v{acc+2}']
        if tau == 0: r.append(f'v_or_b32 v{d}, 1, v{d}' if ph else f'v_and_b32 v{d}, -2, v{d}')
        return r
    seq = [(kc,Q,tp+i) for Q in range(2) for tp in (0,2) for kc in range(2) for i in range(2)]
    fill = {6: fin(0,0)[:2], 7: fin(0,0)[2:], 8: fin(0,1)[:2], 9: fin(0,1)[2:], 10: fin(0,2)[:2], 11: fin(0,2)[2:]+fin(0,3)[:1],
            12: fin(0,3)[1:], 13: ['ST0'], 14: fin(1,0)[:2], 15: fin(1,0)[2:]+fin(1,1)}
    a.wl('o0')
    for i, o in enumerate(seq):
        if i == 2: a.wl('o1')
        if i == 12: a.wl('st')
        omf(*o)
        if i == 1: stage(a, 'oB')
        for x in fill.get(i, []):
            if x == 'ST0': a.vm(f'buffer_store_dwordx4 {vr(vAq,4)}, v{vPW}, {W}, 0 offen {st}', 'P')
            else: a(x)
    for x in fin(1,2) + fin(1,3): a(x)
    a.vm(f'buffer_store_dwordx4 {vr(vAq+4,4)}, v{vPW}, {W}, s{sP1} offen {st}', 'P')
    stage(a, ('q',0))
    a(f's_add_u32 s{sN}, s{sN}, 1\ns_mov_b32 s{sCnt}, 0')
    for r in list(range(vAk, 128, 2)) + list(range(vAq, vAk, 2)): a('v_mov_b64 v[%d:%d], 0' % (r, r+1))
    if cfg.get('post_hook'): cfg['post_hook'](a, par, L)
    stamp(a, cfg, 4)
    if 7 in cfg.get('stamps', ()): a('s_waitcnt vmcnt(0)')
    stamp(a, cfg, 7)
    for i in range(cfg.get('d1', 0)): a('s_sleep 1')
    G, R, D = vM, vM+8, vM+16
    a(f'''
    {L}P1:
    buffer_load_dwordx4 {vr(R,4)}, v{vPR}, {W}, 0 offen sc1
    buffer_load_dwordx4 {vr(R+4,4)}, v{vPR}, {W}, 0 offen offset:1024 sc1
    s_add_u32 s{sCnt}, s{sCnt}, 1
    s_cmp_gt_u32 s{sCnt}, {POLLMAX}
    s_cbranch_scc1 KEND
    s_waitcnt vmcnt(1)
    v_mfma_f32_16x16x32_bf16 {vr(D,4)}, {vr(R,4)}, {vr(vDel,4)}, 0
    s_waitcnt vmcnt(0)
    v_mfma_f32_16x16x32_bf16 {vr(D,4)}, {vr(R+4,4)}, {vr(vDel,4)}, {vr(D,4)}
    v_bitop3_b32 v{vqT}, v{R}, v{R+4}, 1 bitop3:{'0x80' if ph else '0xa8'}
    {'v_cmpx_ne_u32' if 'mask' in OPT else 'v_cmp_ne_u32'} vcc, {ph}, v{vqT}
    s_cbranch_vccnz {L}P1
    {'s_mov_b64 exec, -1' if 'mask' in OPT else ''}
    v_add_f32 v{D}, v{D}, v{D+1}
    v_add_f32 v{D+2}, v{D+2}, v{D+3}
    v_add_f32 v{D}, v{D}, v{D+2}
    v_mov_b32_dpp v{D+1}, v{D} quad_perm:[2,3,2,3] {dp}
    v_cvt_pk_bf16_f32 v{D}, v{D}, v{D+1}
    {f'v_or_b32 v{D}, 1, v{D}' if ph else f'v_and_b32 v{D}, -2, v{D}'}
    buffer_store_dword v{D}, v{vMW}, {W}, 0 offen {st}
    v_readlane_b32 s{sRdy}, v{vT}, 0
    v_readlane_b32 s{sFlK}, v{vT}, 1
    s_min_u32 s{sRdy}, s{sRdy}, s{sFlK}
    s_sub_u32 s{sRdy}, s{sRdy}, 2
    ''')
    if cfg.get('time'): a(f's_add_u32 s72, s72, s{sCnt}')
    a(f's_mov_b32 s{sCnt}, 0')
    stamp(a, cfg, 5)
    for i in range(cfg.get('d2', 0)): a('s_sleep 1')
    t3 = '0x80' if ph else '0xfe'
    a(f'''
    {L}P2:
    buffer_load_dwordx4 {vr(G,4)}, v{vX}, {W}, s{sOM} offen sc1
    buffer_load_dwordx4 {vr(G+4,4)}, v{vX}, {W}, s{sOM} offen offset:1024 sc1
    s_add_u32 s{sCnt}, s{sCnt}, 1
    s_cmp_gt_u32 s{sCnt}, {POLLMAX}
    s_cbranch_scc1 KEND
    s_waitcnt vmcnt(1)
    v_bitop3_b32 v{vqT}, v{G}, v{G+1}, v{G+2} bitop3:{t3}
    s_waitcnt vmcnt(0)
    v_bitop3_b32 v{vqT}, v{vqT}, v{G+3}, v{G+4} bitop3:{t3}
    v_bitop3_b32 v{vqT}, v{vqT}, v{G+5}, v{G+6} bitop3:{t3}
    v_bitop3_b32 v{vqT}, v{vqT}, v{G+7}, 1 bitop3:{'0x80' if ph else '0xa8'}
    {'v_cmpx_ne_u32' if 'mask' in OPT else 'v_cmp_ne_u32'} vcc, {ph}, v{vqT}
    s_cbranch_vccnz {L}P2
    {'s_mov_b64 exec, -1' if 'mask' in OPT else ''}
    ''')
    if cfg.get('time'): a(f's_add_u32 s73, s73, s{sCnt}')
    stamp(a, cfg, 6)
    a.vq = []

def loop(a, st, cfg, L):
    a(f'{L}LOOP:')
    step(a, 0, st, cfg, L+'A')
    step(a, 1, st, cfg, L+'B')
    a(f's_branch {L}LOOP')
    a(f'{L}BTAIL:')
    a(f'''
    buffer_store_dwordx4 {vr(vkT,4)}, v{vX}, s[4:7], s{sOKM} offen sc1
    buffer_store_dwordx2 {vr(vvm,2)}, v{vX}, s[4:7], s{sOKM} offen offset:1024 sc1
    s_waitcnt vmcnt(0)
    v_mov_b32 v{vT}, 0xff
    buffer_store_dword v{vT}, v{vFl}, s[4:7], 0 offen sc1
    s_branch CH_END
    ''')
    for x in 'AB':
        a(f'{L}{x}RS:')
        rdy(a, f'{L}{x}RL')
        a(f's_branch {L}{x}RB')

def chain(a, cfg):
    ABL.clear(); ABL.update(cfg.get('abl', ())); OPT.clear(); OPT.update(cfg.get('opt', ()))
    prologue(a, cfg)
    if cfg.get('time'):
        a(f's_memtime s[{sT0}:{sT0+1}]\ns_waitcnt lgkmcnt(0)\ns_mov_b32 s81, s{sT0}')
        for k in range(10): a('s_mov_b32 s%d, 0' % (64+k))
    a(f's_cmp_eq_u32 s{S_PURE}, 0\ns_cbranch_scc1 CHS_LOOP')
    loop(a, '', cfg, 'CHP_')
    loop(a, 'sc1', cfg, 'CHS_')
    a('CH_END:')
```

```python
from asmlib import *
NAME = 'adaLN_cond__memory_aug_recurrent_mem_tr__dense_activation_silu__prompt'
WS_BYTES = 0x10000000
MB = 1 << 20
WS_H   = 0
WS_KC  = 2*MB
WS_VC  = 18*MB
WS_QC  = 34*MB
WS_KM  = 50*MB + 0x40000
WS_P   = 67*MB
WS_M   = 67*MB + 0x40000
WS_FL  = 67*MB + 0x50000
WS_MOD = 67*MB + 0x60000
WS_X   = 68*MB
S_WS = 4
S_DBG = 8
S_T = 12
S_RANK = 16; S_WAVE = 17; S_PURE = 18
LOG2E = 1.4426950408889634
import struct
def f32(x): return '0x%08x' % struct.unpack('<I', struct.pack('<f', x))[0]
S_TEAM = 19; S_BAR = 3
D_BAR1, D_BAR2 = 32, 48
WS_HF  = WS_FL + 0x8000
WS_XF  = WS_FL + 16384
WS_H2  = 68*MB
WS_PY  = 69*MB
OOB = '0x80000000'
POLLMAX = '0x20000'
def arrive(a, v0, v1, L, chain=False):
    a(f's_cmp_lg_u32 s{S_WAVE}, 0\ns_cbranch_scc1 {L}\nv_mov_b32 v{v0}, 1\ns_mov_b64 exec, 1')
    if chain:
        a(f'v_mov_b32 v{v1}, s{S_BAR}\nbuffer_atomic_add v{v0}, v{v1}, s[{S_DBG}:{S_DBG+3}], 0 offen offset:76 sc1')
    else:
        a(f"""
        s_cmp_gt_u32 s{S_TEAM}, 4
        s_cselect_b32 s99, 8, 4
        s_lshl_b32 s98, s99, 4
        s_add_u32 s98, s98, 64
        s_cmp_eq_u32 s{S_TEAM}, 4
        s_cselect_b32 s98, 0, s98
        s_cselect_b32 s99, 0, s99
        s_cselect_b32 s97, 31, 95
        v_mov_b32 v{v1}, s{S_BAR}
        buffer_atomic_add v{v0}, v{v1}, s[{S_DBG}:{S_DBG+3}], s98 offen sc0 sc1
        s_waitcnt vmcnt(0)
        v_readfirstlane_b32 s98, v{v0}
        v_mov_b32 v{v0}, 32
        s_cmp_lg_u32 s98, s97
        s_cbranch_scc1 {L}N
        buffer_store_dword v{v0}, v{v1}, s[{S_DBG}:{S_DBG+3}], s99 offen offset:64 sc1
        {L}N:
        """)
    a(f's_mov_b64 exec, -1\n{L}:')
def dbgpoll(a, va, vv, L, mask=15, sleep=0):
    a(f"""
    v_mbcnt_lo_u32_b32 v{vv}, -1, 0
    v_lshlrev_b32 v{va}, 2, v{vv}
    v_add_u32 v{va}, s{S_BAR}, v{va}
    s_mov_b32 s99, 0
    s_mov_b64 exec, 15
    {L}:
    buffer_load_dword v{vv}, v{va}, s[{S_DBG}:{S_DBG+3}], 0 offen offset:64 sc1
    s_add_u32 s99, s99, 1
    s_cmp_gt_u32 s99, {POLLMAX}
    s_cbranch_scc1 KEND
    s_waitcnt vmcnt(0)
    v_cmp_lt_u32 vcc, 0xffff, v{vv}
    s_mov_b32 s98, 0
    s_cbranch_vccnz {L}X
    v_cmp_eq_u32 vcc, 32, v{vv}
    s_and_b32 s97, vcc_lo, {mask}
    s_mov_b32 s98, 1
    s_cmp_eq_u32 s97, {mask}
    s_cbranch_scc1 {L}X
    {('s_sleep %d' % sleep) if sleep else ''}
    s_branch {L}
    {L}X:
    s_mov_b64 exec, -1
    """)
def dbgpoll_wg(a, va, vv, L, lds, mask=15, then=None):
    a(f's_cmp_lg_u32 s{S_WAVE}, 0\ns_cbranch_scc1 {L}B')
    dbgpoll(a, va, vv, L, mask, sleep=4)
    if then: then()
    a(f'''
    v_mov_b32 v{va}, {lds}
    v_mov_b32 v{vv}, s98
    ds_write_b32 v{va}, v{vv}
    s_waitcnt lgkmcnt(0)
    {L}B:
    s_barrier
    v_mov_b32 v{va}, {lds}
    ds_read_b32 v{vv}, v{va}
    s_waitcnt lgkmcnt(0)
    v_readfirstlane_b32 s98, v{vv}
    s_cmp_eq_u32 s98, 0
    s_cbranch_scc1 FALLBACK
    ''')
WS_TM = 80*MB
def tabs(a, cfg, k):
    if cfg.get('time'): a(f's_waitcnt lgkmcnt(0)\ns_memtime s[62:63]\ns_waitcnt lgkmcnt(0)\ns_mov_b32 s81, s62\ns_sub_u32 s{64+k}, s62, s60'); a.dq = []
def tacc(a, cfg, k):
    if cfg.get('xst'): a(f's_waitcnt lgkmcnt(0)\ns_memtime s[62:63]\ns_waitcnt lgkmcnt(0)\ns_sub_u32 s80, s62, s81\ns_mov_b32 s81, s62\ns_add_u32 s{64+k}, s{64+k}, s80'); a.dq = []
def tdump(a, cfg):
    if not cfg.get('time'): return
    a(f'''
    s_cmp_lg_u32 s{S_WAVE}, 0
    s_cbranch_scc1 KEND
    s_lshl_b32 s20, s{S_TEAM}, 5
    s_add_u32 s20, s20, s{S_RANK}
    s_lshl_b32 s20, s20, 6
    s_add_u32 s20, s20, {WS_TM}
    v_mov_b32 v44, s20
    s_memrealtime s[84:85]
    s_waitcnt vmcnt(0) lgkmcnt(0)
    s_mov_b32 s79, s84
    s_mov_b32 s78, s82
    ''')
    for i in range(16): a(f'v_mov_b32 v{48+i}, s{64+i}')
    a('s_mov_b64 exec, 1')
    for i in range(4): a(f'buffer_store_dwordx4 v[{48+4*i}:{51+4*i}], v44, s[4:7], 0 offen offset:{16*i}')
```

```python
import sys
sys.path.insert(0, 'gen')
from common import *
import chain as ch, qkv as qk, xrole as xr
def body(cfg):
    a = B()
    if cfg.get('time'): a('s_memtime s[60:61]\ns_memrealtime s[82:83]')
    a(f'''
    s_cmp_ge_u32 s2, 256
    s_cbranch_scc1 KEND
    s_load_dwordx4 s[24:27], s[0:1], 104
    s_getreg_b32 s{S_TEAM}, hwreg(HW_REG_XCC_ID, 0, 4)
    v_lshrrev_b32 v1, 6, v0
    s_and_b32 s{S_TEAM}, s{S_TEAM}, {cfg.get('xmask', 7)}
    v_readfirstlane_b32 s{S_WAVE}, v1
    s_lshl_b32 s20, s{S_TEAM}, 2
    s_and_b32 s21, s2, 0xc0
    s_add_u32 s20, s20, s21
    s_lshr_b32 s21, s21, 3
    v_mov_b32 v3, 1
    v_mov_b32 v4, s20
    v_mov_b32 v5, 0
    s_mov_b32 s{S_PURE}, 1
    s_mov_b32 s{S_BAR}, {D_BAR1}
    s_waitcnt lgkmcnt(0)
    ''')
    a.srd(S_DBG, 24, 256); a.srd(S_WS, 26, WS_BYTES)
    a(f'''
    s_cmp_lg_u32 s{S_WAVE}, 0
    s_cbranch_scc1 E_SK
    s_mov_b64 exec, 1
    buffer_atomic_add v3, v4, s[8:11], 0 offen sc0 sc1
    s_waitcnt vmcnt(0)
    ds_write_b32 v5, v3
    s_waitcnt lgkmcnt(0)
    s_mov_b64 exec, -1
    E_SK:
    s_barrier
    ds_read_b32 v3, v5
    s_waitcnt lgkmcnt(0)
    v_readfirstlane_b32 s20, v3
    s_barrier
    s_add_u32 s{S_RANK}, s20, s21
    s_cmp_lt_u32 s20, 8
    s_cbranch_scc1 DISP
    v_mov_b32 v3, 0x10000
    s_mov_b64 exec, 1
    buffer_atomic_add v3, v5, s[8:11], 0 offen offset:{D_BAR1+76} sc1
    s_mov_b64 exec, -1
    FALLBACK:
    s_waitcnt vmcnt(0) lgkmcnt(0)
    s_barrier
    s_lshr_b32 s{S_TEAM}, s2, 5
    s_and_b32 s{S_RANK}, s2, 31
    s_mov_b32 s{S_PURE}, 0
    s_mov_b32 s{S_BAR}, {D_BAR2}
    v_mbcnt_lo_u32_b32 v0, -1, 0
    v_mbcnt_hi_u32_b32 v0, -1, v0
    s_lshl_b32 s20, s{S_WAVE}, 6
    v_add_u32 v0, s20, v0
    DISP:
    s_cmp_ge_u32 s{S_TEAM}, 4
    s_cbranch_scc1 XR
    s_cmp_lg_u32 s{S_TEAM}, 0
    s_cbranch_scc1 QKV
    ''')
    ch.chain(a, cfg)
    if cfg.get('time'):
        a('s_memtime s[50:51]\ns_waitcnt lgkmcnt(0)\ns_sub_u32 s75, s50, s48\ns_sub_u32 s74, s48, s60')
        tdump(a, cfg)
    a('KEND:\ns_endpgm')
    qk.qkv(a, cfg)
    xr.xrole(a, cfg)
    return a.text(verbose=cfg.get('verbose'))
def full(cfg={}):
    ref = open('cdna_kernels/%s.s.ref' % NAME).read().split('\n')
    i = [k for k, l in enumerate(ref) if l.startswith('; @launch')][0]
    j = [k for k, l in enumerate(ref) if l.startswith(NAME + '_kernel:')][0]
    e = [k for k, l in enumerate(ref) if l.startswith('s_endpgm')][0]
    head = ref[:i] + ['; @launch grid=(256,1,1) block=(256,1,1) lds=163840'] + ref[i+1:j+1]
    tail = [l.replace('next_free_vgpr 256', 'next_free_vgpr 512') for l in ref[e:]]
    return '\n'.join(head) + '\n' + body(cfg) + '\n'.join(tail)
if __name__ == '__main__':
    out = sys.argv[1] if len(sys.argv) > 1 else 'cdna_kernels/%s.s' % NAME
    cfg = eval(sys.argv[2]) if len(sys.argv) > 2 else {}
    open(out, 'w').write(full(cfg))
```

```python
from common import *
def qkv(a, cfg):
    vL, vF, vA0, vA1, vR = 1, 2, 3, 4, 6
    vH, vB, vD, vO, vT = 16, 48, 112, 128, 10
    sW, sO, sH, sN = 20, 36, 37, 38
    a(f'''
    QKV:
    s_load_dwordx4 s[24:27], s[0:1], 16
    s_load_dwordx2 s[28:29], s[0:1], 32
    v_and_b32 v40, 63, v0
    v_and_b32 v41, 15, v0
    v_bfe_u32 v42, v0, 4, 2
    v_lshlrev_b32 v{vL}, 4, v40
    s_lshl_b32 s36, s{S_TEAM}, 12
    s_lshl_b32 s37, s{S_RANK}, 7
    s_add_u32 s36, s36, s37
    s_lshl_b32 s37, s{S_WAVE}, 2
    s_add_u32 s36, s36, s37
    s_add_u32 s36, s36, {WS_FL}
    v_mov_b32 v43, {OOB}
    v_mov_b32 v44, s36
    v_cmp_eq_u32 vcc, 0, v40
    v_cndmask_b32 v{vF}, v43, v44, vcc
    v_mov_b32 v43, 0
    ''')
    a.vm(f'buffer_store_dword v43, v{vF}, s[4:7], 0 offen sc1', 'z')
    a(f'''
    s_waitcnt lgkmcnt(0)
    s_cmp_eq_u32 s{S_TEAM}, 1
    s_cselect_b32 s20, s26, s24
    s_cselect_b32 s21, s27, s25
    s_cmp_eq_u32 s{S_TEAM}, 2
    s_cselect_b32 s20, s28, s20
    s_cselect_b32 s21, s29, s21
    s_mov_b32 s22, 0x400000
    s_mov_b32 s23, 0x00020000
    v_lshlrev_b32 v43, 1, v42
    v_xor_b32 v43, v43, v41
    v_lshlrev_b32 v43, 4, v43
    v_lshl_add_u32 v43, v42, 13, v43
    s_lshl_b32 s36, s{S_RANK}, 8
    v_add_u32 v{vA0}, s36, v43
    v_xor_b32 v{vA1}, 0x80, v{vA0}
    s_lshl_b32 s36, s{S_WAVE}, 20
    s_lshl_b32 s37, s{S_WAVE}, 15
    ''')
    for i in range(32):
        a(f's_add_u32 m0, s37, {i*1024}')
        a.vm(f'buffer_load_dwordx4 v{vA1 if (i>>1)&1 else vA0}, s[20:23], s36 offen lds', 'w')
        a('s_add_u32 s36, s36, 32768')
    a(f'''
    v_lshrrev_b32 v43, 2, v41
    v_and_b32 v44, 3, v41
    v_and_b32 v45, 1, v42
    v_lshl_add_u32 v45, v45, 2, v43
    s_lshl_b32 s36, s{S_WAVE}, 1
    v_xor_b32 v45, s36, v45
    v_lshl_add_u32 v43, v42, 3, v43
    v_lshlrev_b32 v43, 8, v43
    v_lshl_add_u32 v43, v45, 5, v43
    v_lshl_add_u32 v{vR}, v44, 3, v43
    v_xor_b32 v{vR+1}, 32, v{vR}
    v_add_u32 v{vR+2}, 0x10000, v{vR}
    v_add_u32 v{vR+3}, 0x10000, v{vR+1}
    ''')
    a.wv('z'); a('s_barrier')
    arrive(a, 43, 44, 'QKV_AR')
    tabs(a, cfg, 0)
    a.wv(); a('s_barrier')
    tabs(a, cfg, 1)
    for T in range(2):
        for ks in range(16):
            for u in range(2):
                o = (32*ks + 4*u)*256
                a.ds(f'ds_read_b64_tr_b16 {vr((T*16+ks)*4+2*u,2,"a")}, v{vR+T+2*(o>>16)} offset:{o & 0xffff}')
            if ks % 4 == 3: a.wl()
    tabs(a, cfg, 2)
    def hpoll():
        a(f'''
        s_cmp_eq_u32 s98, 0
        s_cbranch_scc1 QKV_HX
        v_lshrrev_b32 v43, 1, v{vL}
        s_mov_b32 s97, {WS_HF}
        QKV_HL:
        buffer_load_dwordx2 v[44:45], v43, s[4:7], s97 offen sc1
        s_add_u32 s99, s99, 1
        s_cmp_gt_u32 s99, {POLLMAX}
        s_cbranch_scc1 KEND
        s_waitcnt vmcnt(0)
        v_and_b32 v44, v44, v45
        v_cmp_ne_u32 vcc, 1, v44
        s_cbranch_vccz QKV_HX
        s_sleep 4
        s_branch QKV_HL
        QKV_HX:
        ''')
    dbgpoll_wg(a, 43, 44, 'QKV_HP', 0x20000, then=hpoll)
    tabs(a, cfg, 3)
    a(f'''
    s_lshl_b32 s36, s{S_WAVE}, 13
    v_add_u32 v{vA0}, s36, v{vL}          ; w*8192 + lane*16
    v_add_u32 v{vA1}, 4096, v{vA0}
    s_lshl_b32 s36, s{S_WAVE}, 11
    v_add_u32 v{vR}, s36, v{vL}           ; w*2048 + lane*16
    s_lshl_b32 s{sO}, s{S_TEAM}, 24
    s_lshl_b32 s37, s{S_RANK}, 13
    s_add_u32 s{sO}, s{sO}, s37
    s_sub_u32 s{sO}, s{sO}, {16*MB - WS_KC}
    s_mov_b32 s{sH}, {WS_H}
    s_mov_b32 s{sN}, 0
    ''')
    def hload():
        for q in range(8):
            a.vm(f'buffer_load_dwordx4 {vr(vH+4*q,4)}, v{vA0 if q < 4 else vA1}, s[4:7], s{sH} offen offset:{(q&3)*1024} sc1', 'h')
        a(f's_add_u32 s{sH}, s{sH}, 32768')
    def hwrite(buf):
        for q in range(8): a.ds(f'ds_write_b128 v{vA0}, {vr(vH+4*q,4)} offset:{buf*32768 + q*1024}', 'hw')
    hload(); a.wv(); hwrite(0); a.wl(); hload()
    a(f'v_mov_b32 v{vT}, 0')
    for i in range(3): a.vm(f'buffer_store_dword v{vT}, v{vF}, s[4:7], 0 offen sc1', 'x')
    tabs(a, cfg, 4)
    a(f's_cmp_eq_u32 s{S_TEAM}, 2\ns_cbranch_scc1 QKV_V')
    for isv in (0, 1):
        L = 'QKV_V' if isv else 'QKV_K'
        a(L + ':')
        for par in range(2):
            a.vq = ['h']*8 + ['x']*3; a.dq = []
            a('s_barrier')
            NB = 8
            def rd(ks):
                for U in range(2):
                    a.ds(f'ds_read_b128 {vr(vB + (ks % NB)*8 + 4*U,4)}, v{vL} offset:{par*32768 + ks*2048 + U*1024}', 'f%d' % ks)
            for ks in range(4): rd(ks)
            for ks in range(16):
                a.wl('f%d' % ks)
                for T in range(2):
                    for U in range(2):
                        w = vr((T*16+ks)*4,4,'a'); h = vr(vB + (ks % NB)*8 + 4*U,4)
                        d = vr(vD + (8*T+4*U if isv else 8*U+4*T),4)
                        a(f'v_mfma_f32_16x16x32_bf16 {d}, {h if isv else w}, {w if isv else h}, {d if ks else 0}')
                if ks + 4 < 16: rd(ks+4)
                if ks == 11:
                    a.wv('h'); hwrite(par ^ 1)
            a.wl(); hload()
            for i in range(8): a(f'v_cvt_pk_bf16_f32 v{vO+i}, v{vD+2*i}, v{vD+2*i+1}')
            a(f'v_mov_b32 v{vT}, s{sN}')
            a.wv('x')
            a.vm(f'buffer_store_dword v{vT}, v{vF}, s[4:7], 0 offen sc1', 'x')
            a.vm(f'buffer_store_dwordx4 {vr(vO,4)}, v{vR}, s[4:7], s{sO} offen sc1', 'x')
            a.vm(f'buffer_store_dwordx4 {vr(vO+4,4)}, v{vR}, s[4:7], s{sO} offen offset:1024 sc1', 'x')
            a(f's_add_u32 s{sO}, s{sO}, 262144\ns_add_u32 s{sN}, s{sN}, 1')
        a(f'''
        s_cmp_lt_u32 s{sN}, 64
        s_cbranch_scc1 {L}
        v_mov_b32 v{vT}, 0xff
        s_waitcnt vmcnt(0)
        buffer_store_dword v{vT}, v{vF}, s[4:7], 0 offen sc1
        ''')
        tabs(a, cfg, 5); tdump(a, cfg)
        a('s_branch KEND')
```

```python
from common import *
vL, vFW, vFR, vKF, vTh, vPW, vPR, vHW, vXO, vQ_, vV_, vOW, vTR, vT, vT2 = range(1, 16)
vDel, vMask, vGa, vSb, vCb, vGb, vX2 = 16, 20, 28, 32, 36, 40, 44
vQ, vK, vV = 48, 64, 96
vKm, vVm, vS, vSm, vP, vB0, vB1, vXr = 112, 128, 132, 140, 144, 148, 150, 152
vF, vY = 160, 192
aWo, aW1, aW2 = 0, 128, 192
sX, sOut = 20, 24
sIt, sOQ, sOK, sOV, sOKM, sOX, sC, sCnt, sPY, sPZ, sH2, sT = 36, 37, 38, 39, 40, 41, 42, 43, 44, 45, 46, 47
L_OF, L_ST, L_T, L_TF, L_V = 0, 8192, 16384, 49152, 57344
dp = 'row_mask:0xf bank_mask:0xf'
W = 's[4:7]'

def xprologue(a, cfg):
    a('XR:')
    xt = lambda k: tabs(a, cfg, k) if cfg.get('xt') else None
    xt(6)
    a(f'''
    s_load_dwordx2 s[20:21], s[0:1], 0
    s_load_dwordx4 s[28:31], s[0:1], 80
    s_load_dwordx2 s[24:25], s[0:1], 96
    v_and_b32 v60, 63, v0          ; lane
    v_and_b32 v61, 15, v0          ; c
    v_bfe_u32 v62, v0, 4, 2        ; g
    v_lshlrev_b32 v{vL}, 4, v60
    s_sub_u32 s48, s{S_TEAM}, 4    ; k
    s_lshl_b32 s49, s48, 5
    s_add_u32 s49, s49, s{S_RANK}  ; xi
    s_lshl_b32 s36, s48, 11
    s_lshl_b32 s37, s{S_WAVE}, 7
    s_add_u32 s36, s36, s37
    s_add_u32 s36, s36, {WS_XF}
    v_lshlrev_b32 v63, 2, v60
    v_add_u32 v63, s36, v63
    v_mov_b32 v64, {OOB}
    v_cmp_gt_u32 vcc, 32, v60
    v_cndmask_b32 v{vFR}, v64, v63, vcc
    v_cmp_eq_u32 vcc, s{S_RANK}, v60
    v_cndmask_b32 v{vFW}, v64, v63, vcc
    s_lshl_b32 s36, s49, 2
    s_add_u32 s36, s36, {WS_HF}
    v_mov_b32 v63, s36
    v_cmp_eq_u32 vcc, 0, v0
    v_cndmask_b32 v59, v64, v63, vcc
    v_mov_b32 v63, 0
    ''')
    a.vm(f'buffer_store_dword v63, v59, {W}, 0 offen sc1', 'z')
    for hop in range(3): a.vm(f'buffer_store_dword v63, v{vFW}, {W}, 0 offen offset:{hop*512} sc1', 'z')
    a(f'''
    s_waitcnt lgkmcnt(0)
    s_mov_b32 s22, {2*MB}
    s_mov_b32 s23, 0x00020000
    s_mov_b32 s26, {2*MB}
    s_mov_b32 s27, 0x00020000
    s_mov_b32 s12, s28
    s_mov_b32 s13, s29
    s_mov_b32 s14, 1024
    s_mov_b32 s15, 0x00020000
    s_mov_b32 s32, s30
    s_mov_b32 s33, s31
    s_mov_b32 s34, {512*6144}
    s_mov_b32 s35, 0x00020000
    v_lshrrev_b32 v63, 2, v0
    v_lshlrev_b32 v64, 4, v63
    s_mov_b32 s36, {8*6144}
    v_mul_lo_u32 v63, v63, s36
    v_and_b32 v65, 3, v0
    v_lshl_add_u32 v63, v65, 4, v63
    s_lshl_b32 s36, s49, 6
    s_cmp_lt_u32 s49, 96
    s_cselect_b32 s36, s36, {OOB}
    v_add_u32 v63, s36, v63
    ''')
    a.vm('buffer_load_dwordx4 v[68:71], v64, s[12:15], 0 offen', 'c')
    for q in range(8):
        a(f's_mov_b32 s36, {q*6144}')
        a.vm(f'buffer_load_dwordx4 {vr(72+4*q,4)}, v63, s[32:35], s36 offen', 'wm')
    a(f'''
    s_lshl_b32 s36, s49, 14
    s_lshl_b32 s37, s{S_WAVE}, 8
    s_add_u32 s36, s36, s37
    v_lshlrev_b32 v63, 10, v61
    v_lshl_add_u32 v63, v62, 4, v63
    v_add_u32 v63, s36, v63
    ''')
    for q in range(4): a.vm(f'buffer_load_dwordx4 {vr(112+4*q,4)}, v63, s[20:23], 0 offen offset:{64*q}', 'x')
    xt(7)
    a.wv('c')
    xt(8)
    a(f's_mov_b32 s36, {f32(-LOG2E)}\ns_mov_b32 s37, 0xffff0000')
    for q in range(8):
        a(f'v_lshlrev_b32 v{104+q}, 16, v{68+q//2}' if q % 2 == 0 else f'v_and_b32 v{104+q}, s37, v{68+q//2}')
    for q in range(8): a(f'v_mul_f32 v{128+q}, s36, v{104+q}')
    for q in range(8): a(f'v_exp_f32 v{128+q}, v{128+q}')
    for q in range(8): a(f'v_add_f32 v{128+q}, 1.0, v{128+q}')
    for q in range(8): a(f'v_rcp_f32 v{128+q}, v{128+q}')
    for q in range(8): a(f'v_mul_f32 v{104+q}, v{104+q}, v{128+q}')
    for q in range(4): a(f'v_cvt_pk_bf16_f32 v{68+q}, v{104+2*q}, v{105+2*q}')
    for q in range(8):
        a(f'v_lshlrev_b32 v{104+q}, 16, v{68+q//2}' if q % 2 == 0 else f'v_and_b32 v{104+q}, s37, v{68+q//2}')
    a.wv('wm')
    xt(9)
    for q in range(8):
        for j in range(8):
            s = 72 + 4*q + j//2
            a(f'v_lshlrev_b32 v{136+j}, 16, v{s}' if j % 2 == 0 else f'v_and_b32 v{136+j}, s37, v{s}')
        for j in range(8):
            a(f'v_mul_f32 v{128+j}, v{104+q}, v{136+j}' if q == 0 else f'v_fmac_f32 v{128+j}, v{104+q}, v{136+j}')
    for r in (4, 8):
        for j in range(8): a(f'v_add_f32_dpp v{128+j}, v{128+j}, v{128+j} row_ror:{r} {dp}')
    a(f'''
    v_lshrrev_b32 v63, 4, v0
    v_lshlrev_b32 v63, 7, v63
    v_lshl_add_u32 v63, v61, 5, v63
    v_cmp_gt_u32 vcc, 4, v61
    s_mov_b64 exec, vcc
    ds_write_b128 v63, v[128:131] offset:{L_T}
    ds_write_b128 v63, v[132:135] offset:{L_T+16}
    s_mov_b64 exec, -1
    ''')
    xt(10)
    a.wv()
    for i in range(32):
        s = 112 + i//2
        a(f'v_lshlrev_b32 v{160+i}, 16, v{s}' if i % 2 == 0 else f'v_and_b32 v{160+i}, s37, v{s}')
    a('v_add_f32 v64, v160, v161\nv_mul_f32 v65, v160, v160\nv_mul_f32 v66, v161, v161')
    for i in range(2, 32):
        a(f'v_add_f32 v64, v64, v{160+i}\nv_fmac_f32 v{65+(i&1)}, v{160+i}, v{160+i}')
    a('v_add_f32 v65, v65, v66')
    for p in ('16', '32'):
        a(f'''
        v_mov_b32 v66, v64
        v_mov_b32 v67, v65
        v_permlane{p}_swap_b32 v64, v66
        v_permlane{p}_swap_b32 v65, v67
        v_add_f32 v64, v64, v66
        v_add_f32 v65, v65, v67
        ''')
    a(f'''
    s_lshl_b32 s36, s{S_WAVE}, 3
    v_lshlrev_b32 v63, 5, v61
    v_add_u32 v66, s36, v63
    ds_write_b64 v66, v[64:65] offset:{L_ST}
    s_waitcnt lgkmcnt(0)
    s_barrier
    ds_read_b128 v[64:67], v63 offset:{L_ST}
    ds_read_b128 v[68:71], v63 offset:{L_ST+16}
    s_cmp_lg_u32 s{S_WAVE}, 0
    s_cbranch_scc1 XR_M1
    v_and_b32 v72, 31, v60
    v_lshrrev_b32 v73, 5, v60
    v_lshlrev_b32 v72, 2, v72
    v_lshl_add_u32 v73, v73, 10, v72
    ''')
    xt(11)
    for r in range(8): a(f'ds_read_b32 v{80+r}, v73 offset:{L_T + r*128}')
    a('s_waitcnt lgkmcnt(0)')
    for r in range(1, 8): a(f'v_add_f32 v80, v80, v{80+r}')
    a(f'''
    v_mov_b32 v81, v80
    v_permlane32_swap_b32 v80, v81
    v_add_f32 v80, v80, v81
    v_cvt_pk_bf16_f32 v80, v80, v80
    v_lshlrev_b32 v80, 16, v80
    s_lshl_b32 s36, s49, 7
    s_add_u32 s36, s36, {WS_MOD}
    s_cmp_lt_u32 s49, 96
    s_cselect_b32 s36, s36, {OOB}
    v_add_u32 v72, s36, v72
    s_mov_b32 exec_hi, 0
    buffer_store_dword v80, v72, {W}, 0 offen sc1
    s_mov_b64 exec, -1
    s_waitcnt vmcnt(0)
    XR_M1:
    ''')
    xt(12)
    arrive(a, 72, 73, 'XR_AR')
    tabs(a, cfg, 0)
    a(f'''
    s_waitcnt lgkmcnt(0)
    v_add_f32 v64, v64, v66
    v_add_f32 v68, v68, v70
    v_add_f32 v65, v65, v67
    v_add_f32 v69, v69, v71
    v_add_f32 v64, v64, v68
    v_add_f32 v65, v65, v69
    v_mul_f32 v64, {f32(1/512)}, v64
    v_mul_f32 v65, {f32(1/512)}, v65
    v_fma_f32 v65, -v64, v64, v65
    v_max_f32 v65, 0, v65
    v_add_f32 v65, {f32(1e-5)}, v65
    v_rsq_f32 v65, v65
    ''')
    for i in range(32): a(f'v_sub_f32 v{160+i}, v{160+i}, v64')
    for i in range(32): a(f'v_mul_f32 v{160+i}, v{160+i}, v65')
    dbgpoll_wg(a, 72, 73, 'XR_BP', L_V, mask=1)
    tabs(a, cfg, 1)
    a(f'''
    s_lshl_b32 s36, s{S_WAVE}, 9
    s_add_u32 s36, s36, {WS_MOD}
    v_lshlrev_b32 v63, 5, v62
    v_add_u32 v63, s36, v63
    v_and_b32 v64, 1, v62
    v_lshlrev_b32 v64, 4, v64
    v_lshl_add_u32 v64, v61, 5, v64
    v_add_u32 v58, s36, v64
    ''')
    for q in range(4):
        for hh in range(2):
            a.vm(f'buffer_load_dwordx4 {vr(192+8*q+4*hh,4)}, v63, {W}, 0 offen offset:{128*q+16*hh} sc1', 'm%d' % q)
            a.vm(f'buffer_load_dwordx4 {vr(224+8*q+4*hh,4)}, v63, {W}, 0 offen offset:{2048+128*q+16*hh} sc1', 'm%d' % q)
    a(f'''
    s_lshr_b32 s36, s49, 1
    s_lshl_b32 s36, s36, 15
    s_and_b32 s37, s49, 1
    s_lshl_b32 s37, s37, 10
    s_add_u32 s36, s36, s37
    s_lshl_b32 s37, s{S_WAVE}, 13
    s_add_u32 s36, s36, s37
    v_add_u32 v63, s36, v{vL}
    s_movk_i32 s36, 0x1000
    ''')
    for q in range(4):
        a.wv('m%d' % q)
        for j in range(8):
            i = 8*q + j
            a(f'v_add_f32 v{224+i}, 1.0, v{224+i}\nv_fma_f32 v{160+i}, v{160+i}, v{224+i}, v{192+i}')
        for j in range(4): a(f'v_cvt_pk_bf16_f32 v{112+4*q+j}, v{160+8*q+2*j}, v{161+8*q+2*j}')
        a.vm(f'buffer_store_dwordx4 {vr(112+4*q,4)}, v63, {W}, {"s36" if q >= 2 else 0} offen offset:{(q&1)*2048} sc1')
    a('s_load_dwordx2 s[12:13], s[0:1], 40\ns_load_dwordx4 s[28:31], s[0:1], 64')
    a.wv(); a('s_barrier')
    a(f'v_mov_b32 v72, 1\nbuffer_store_dword v72, v59, {W}, 0 offen sc1')
    tabs(a, cfg, 2)
    a(f'''
    s_waitcnt lgkmcnt(0)
    s_mov_b32 s14, 0x400000
    s_mov_b32 s32, s30
    s_mov_b32 s33, s31
    s_mov_b32 s34, {1376*1024}
    s_mov_b32 s30, {1376*1024}
    s_mov_b32 s31, 0x00020000
    s_lshl_b32 s36, s{S_WAVE}, 8
    v_lshlrev_b32 v63, 4, v61
    v_add_u32 v63, s36, v63            ; 256w + 16c
    s_lshl_b32 s36, s{S_RANK}, 17
    v_lshl_add_u32 v64, v62, 12, v63
    v_add_u32 v64, s36, v64            ; Wo
    s_lshl_b32 s36, s{S_RANK}, 16
    v_lshl_add_u32 v65, v62, 14, v63
    v_add_u32 v65, s36, v65            ; w2
    s_mul_i32 s36, s{S_WAVE}, {128*2752}
    s_lshl_b32 s37, s{S_RANK}, 7
    v_lshl_add_u32 v66, v61, 3, s37    ; 128 rank + 8c
    v_cmp_gt_u32 vcc, 2752, v66
    v_mul_u32_u24 v67, {8*2752}, v62
    v_add3_u32 v66, v66, v67, s36
    v_mov_b32 v67, {OOB}
    v_cndmask_b32 v66, v67, v66, vcc   ; w1
    s_mov_b32 s50, 0x05040100
    s_mov_b32 s51, 0x07060302
    ''')
    R = 128
    for ks in range(4):
        for j in range(8):
            if j % 4 == 0: a(f's_mov_b32 s36, {(32*ks + 16*(j>>2))*1024}')
            a.vm(f'buffer_load_dwordx4 {vr(R+32*ks+4*j,4)}, v64, s[12:15], s36 offen offset:{(j&3)*1024}', 'wo%d' % ks)
    def perm(dst, lo, hi, half, k):
        t = 68 + (k & 7)
        a(f'v_perm_b32 v{t}, v{hi}, v{lo}, s{50+half}\nv_accvgpr_write_b32 a{dst}, v{t}')
    for ks in range(4):
        a.wv('wo%d' % ks)
        for T in range(8):
            for q in range(4): perm(aWo + (ks*8+T)*4 + q, R+32*ks+8*q+(T>>1), R+32*ks+8*q+4+(T>>1), T & 1, q)
    for ks in range(4):
        for j in range(8):
            a(f's_mov_b32 s36, {(32*ks + j)*2752}')
            a.vm(f'buffer_load_dwordx2 {vr(R+16*ks+2*j,2)}, v66, s[28:31], s36 offen', 'w1')
    for r in range(16):
        if r % 4 == 0: a(f's_mov_b32 s36, {(r>>2)*4096}')
        a.vm(f'buffer_load_dwordx4 {vr(R+64+4*r,4)}, v65, s[32:35], s36 offen offset:{(r&3)*1024}', 'w2')
    a(f'''
    v_lshrrev_b32 v64, 2, v60
    v_and_b32 v65, 3, v60
    v_lshlrev_b32 v65, 2, v65
    v_lshl_add_u32 v65, v64, 12, v65
    s_lshl_b32 s36, s{S_RANK}, 7
    s_add_u32 s36, s36, {WS_FL}
    v_add_u32 v65, s36, v65
    v_mov_b32 v67, {OOB}
    v_cmp_gt_u32 vcc, 16, v60
    v_cndmask_b32 v{vKF}, v67, v65, vcc
    s_lshl_b32 s36, s{S_WAVE}, 13
    s_lshl_b32 s37, s{S_RANK}, 8
    s_add_u32 s37, s36, s37
    v_lshlrev_b32 v64, 17, v62
    v_lshl_add_u32 v64, v61, 4, v64
    v_add_u32 v{vPW}, s37, v64
    s_lshl_b32 s37, s{S_RANK}, 15
    s_add_u32 s37, s36, s37
    v_add_u32 v{vPR}, s37, v{vL}
    v_add_u32 v{vTR}, s36, v{vL}       ; w*8192 + lane*16
    v_lshrrev_b32 v64, 2, v61
    v_lshlrev_b32 v64, 11, v64
    v_and_b32 v65, 3, v61
    v_lshl_add_u32 v64, v65, 8, v64
    v_lshl_add_u32 v64, v62, 3, v64
    s_lshr_b32 s37, s{S_RANK}, 4
    s_lshl_b32 s37, s37, 10
    s_add_u32 s36, s36, s37
    s_and_b32 s37, s{S_RANK}, 15
    s_lshl_b32 s37, s37, 4
    s_add_u32 s36, s36, s37
    v_add_u32 v64, s36, v64
    v_cmp_gt_u32 vcc, 32, v60
    v_cndmask_b32 v{vHW}, v67, v64, vcc
    v_and_b32 v64, 1, v62
    v_lshl_add_u32 v64, v64, 3, v63
    s_lshl_b32 s36, s{S_RANK}, 10
    v_add_u32 v{vXO}, s36, v64
    s_and_b32 s36, s{S_WAVE}, 1
    s_lshr_b32 s37, s{S_WAVE}, 1
    s_lshl_b32 s38, s36, 10
    v_add_u32 v{vQ_}, s38, v{vL}
    s_lshl_b32 s38, s37, 12
    v_add_u32 v{vV_}, s38, v{vL}
    s_lshl_b32 s38, s36, 12
    s_lshl_b32 s39, s37, 11
    s_add_u32 s38, s38, s39
    v_add_u32 v{vOW}, s38, v{vL}
    v_and_b32 v64, 1, v61
    v_lshlrev_b32 v64, 4, v64
    v_mov_b32 v65, 0x3f80
    v_lshlrev_b32 v64, v64, v65
    v_bfe_u32 v65, v61, 1, 2
    ''')
    for i in range(4): a(f'v_cmp_eq_u32 vcc, {i}, v65\nv_cndmask_b32 v{vDel+i}, 0, v64, vcc')
    a(f'''
    s_lshl_b32 s36, s36, 4
    v_lshlrev_b32 v64, 2, v62
    v_sub_u32 v64, v61, v64
    v_add_u32 v64, s36, v64
    v_mov_b32 v65, {f32(-1e30)}
    ''')
    for U in range(2):
        for i in range(4): a(f'v_cmp_gt_i32 vcc, {16*U+i}, v64\nv_cndmask_b32 v{vMask+4*U+i}, 0, v65, vcc')
    a(f'''
    s_add_u32 s36, s48, 1
    v_mov_b32 v64, s36
    v_cmp_lt_u32 vcc, 3, v60
    v_cndmask_b32 v{vTh}, 0, v64, vcc
    s_lshl_b32 s36, s48, 18
    s_lshl_b32 s37, s{S_RANK}, 13
    s_add_u32 s36, s36, s37
    s_add_u32 s{sOKM}, s36, {WS_KM}
    s_add_u32 s{sOV}, s36, {WS_VC}
    s_add_u32 s{sOK}, s36, {WS_KC}
    s_add_u32 s{sOQ}, s36, {WS_QC}
    s_lshl_b32 s{sOX}, s48, 15
    s_add_u32 s{sH2}, s{sOX}, {WS_H2}
    s_lshl_b32 s{sPY}, s48, 21
    s_add_u32 s{sPY}, s{sPY}, {WS_PY}
    s_add_u32 s{sPZ}, s{sPY}, {MB}
    s_mov_b32 s{sC}, {f32(128**-0.5*LOG2E)}
    s_mov_b32 s{sIt}, 0
    ''')
    a.wv('w1')
    for ks in range(4):
        for T in range(4):
            for q in range(4): perm(aW1 + (ks*4+T)*4 + q, R+16*ks+4*q+(T>>1), R+16*ks+4*q+2+(T>>1), T & 1, q)
    a.wv('w2')
    for s in range(2):
        for T in range(8):
            for q in range(4):
                rows = [4*(jj&3) + 2*s + (jj>>2) for jj in (2*q, 2*q+1)]
                perm(aW2 + (s*8+T)*4 + q, R+64+4*rows[0]+(T>>1), R+64+4*rows[1]+(T>>1), T & 1, q)
    a(f'v_mov_b32 v{vB0+1}, 0\nv_mov_b32 v{vB1}, 0')
    dbgpoll_wg(a, 72, 73, 'XR_BQ', L_V)
    a('s_movk_i32 s97, 0x1000\ns_movk_i32 s98, 0x2000')
    a.vm(f'buffer_load_dwordx4 {vr(vGa,4)}, v58, {W}, s97 offen sc1')
    a.vm(f'buffer_load_dwordx4 {vr(vSb,4)}, v58, {W}, s97 offen offset:2048 sc1')
    a.vm(f'buffer_load_dwordx4 {vr(vCb,4)}, v58, {W}, s98 offen sc1')
    a.vm(f'buffer_load_dwordx4 {vr(vGb,4)}, v58, {W}, s98 offen offset:2048 sc1')
    a.wv()
    for i in range(4): a(f'v_add_f32 v{vCb+i}, 1.0, v{vCb+i}')
    tabs(a, cfg, 3)
    if cfg.get('time') and not cfg.get('xt'):
        for k in range(6, 16): a(f's_mov_b32 s{64+k}, 0')
    kpoll(a, 'XR_K0')
    qkvload(a)
    a(f'''
    s_add_u32 s{sT}, s48, 2
    v_mov_b32 v{vT}, s{sT}
    v_add_u32 v{vTh}, 4, v{vTh}
    v_cmp_gt_u32 vcc, 64, v{vL}
    v_cndmask_b32 v{vTh}, v{vTh}, v{vT}, vcc
    ''')

def kpoll(a, L):
    a(f'''
    s_mov_b32 s{sCnt}, 0
    s_mov_b64 exec, 0xffff
    s_branch {L}E
    {L}:
    s_sleep 2
    {L}E:
    buffer_load_dword v{vT}, v{vKF}, {W}, 0 offen sc1
    s_add_u32 s{sCnt}, s{sCnt}, 1
    s_cmp_gt_u32 s{sCnt}, {POLLMAX}
    s_cbranch_scc1 KEND
    s_waitcnt vmcnt(0)
    v_cmp_lt_u32 vcc, v{vT}, v{vTh}
    s_cbranch_vccnz {L}
    s_mov_b64 exec, -1
    ''')
    a.vq = []
def hpoll(a, L, hop, n):
    a(f'''
    s_mov_b32 s{sCnt}, 0
    {'s_mov_b32 exec_hi, 0' if n == 32 else 's_mov_b64 exec, ' + hex((1 << n) - 1)}
    {L}:
    buffer_load_dword v{vT}, v{vFR}, {W}, 0 offen offset:{hop*512} sc1
    s_add_u32 s{sCnt}, s{sCnt}, 1
    s_cmp_gt_u32 s{sCnt}, {POLLMAX}
    s_cbranch_scc1 KEND
    s_waitcnt vmcnt(0)
    v_cmp_gt_u32 vcc, s{sIt}, v{vT}
    s_cbranch_vccnz {L}
    s_mov_b64 exec, -1
    ''')
    a.vq = []
def hflag(a, hop, st):
    a(f'v_mov_b32 v{vT2}, s{sIt}')
    a.wv()
    a.vm(f'buffer_store_dword v{vT2}, v{vFW}, {W}, 0 offen offset:{hop*512} {st}')
def qkvload(a):
    for hh in range(2):
        if hh: a(f's_add_u32 s{sT}, s{sOQ}, 4096')
        for k in range(2): a.vm(f'buffer_load_dwordx4 {vr(vQ+8*hh+4*k,4)}, v{vQ_}, {W}, s{sT if hh else sOQ} offen offset:{2048*k} sc1', 'q')
    for hh in range(2):
        if hh: a(f's_add_u32 s{sT}, s{sOK}, 4096')
        for k in range(4): a.vm(f'buffer_load_dwordx4 {vr(vK+16*hh+4*k,4)}, v{vL}, {W}, s{sT if hh else sOK} offen offset:{1024*k} sc1', 'q')
    for k in range(4): a.vm(f'buffer_load_dwordx4 {vr(vV+4*k,4)}, v{vV_}, {W}, s{sOV} offen offset:{1024*k} sc1', 'q')
    for s in (sOQ, sOK, sOV): a(f's_add_u32 s{s}, s{s}, {MB}')

def mm(d, A, B, c, k=32): return f'v_mfma_f32_16x16x{k}_bf16 {d}, {A}, {B}, {c}'
def proj(a, aW, nk, sP, st):
    for U in range(2):
        for ks in range(nk):
            a.wl('F%d' % (U*nk+ks))
            for T in range(8):
                d = vr(vY+32*U+4*T,4)
                a(mm(d, vr(vF+(U*nk+ks)*4,4), vr(aW+(ks*8+T)*4,4,'a'), d if ks else 0))
                if U == 1 and (ks*8+T) >= 4 and (ks*8+T) < 12:
                    i = (ks*8+T-4) >> 1; hq = (ks*8+T-4) & 1
                    for q in (2*hq, 2*hq+1): a(f'v_cvt_pk_bf16_f32 v{vKm+4*i+q}, v{vY+8*q+i}, v{vY+8*q+4+i}')
                    if hq:
                        a(f's_add_u32 s{sT}, s{sP}, {i*32768}')
                        a.vm(f'buffer_store_dwordx4 {vr(vKm+4*i,4)}, v{vPW}, {W}, s{sT} offen {st}')
    for i in range(4):
        for q in range(4): a(f'v_cvt_pk_bf16_f32 v{vY+4*i+q}, v{vY+32+8*q+i}, v{vY+32+8*q+4+i}')
        a(f's_add_u32 s{sT}, s{sP}, {(16+i)*32768}')
        a.vm(f'buffer_store_dwordx4 {vr(vY+4*i,4)}, v{vPW}, {W}, s{sT} offen {st}')
def reduce(a, sP, nq):
    a(f's_add_u32 s{sT}, s{sP}, 4096')
    for q in range(nq): a.vm(f'buffer_load_dwordx4 {vr(vF+4*q,4)}, v{vPR}, {W}, s{sP if q < 4 else sT} offen offset:{(q&3)*1024} sc1', 'r%d' % q)
    for q in range(nq):
        a.wv('r%d' % q)
        d = vr(vS+4*(q&1),4)
        a(mm(d, vr(vDel,4), vr(vF+4*q,4), d if q >= 2 else 0))
    for i in range(4): a(f'v_add_f32 v{vS+i}, v{vS+i}, v{vS+4+i}')

def xloop(a, st, L, cfg):
    a(f'{L}LOOP:')
    a.vq = []; a.dq = []
    a(f's_add_u32 s{sIt}, s{sIt}, 1\ns_waitcnt vmcnt(0)')
    for ks in range(4):
        for U in range(2):
            d = vr(vS+4*U,4)
            a(mm(d, vr(vK+8*ks+4*U,4), vr(vQ+4*ks,4), d if ks else vr(vMask+4*U,4)))
    tacc(a, cfg, 6)
    kpoll(a, L+'K')
    tabs(a, cfg, 4)
    a(f's_add_u32 s{sT}, s{sOKM}, 4096')
    for ks in range(4): a.vm(f'buffer_load_dwordx4 {vr(vKm+4*ks,4)}, v{vL}, {W}, s{sOKM if ks < 2 else sT} offen offset:{(ks&1)*2048} sc1', 'k%d' % ks)
    for k in range(2): a.vm(f'buffer_load_dwordx2 {vr(vVm+2*k,2)}, v{vV_}, {W}, s{sOKM} offen offset:{1024+2048*k} sc1', 'vm')
    a.vm(f'buffer_load_dwordx2 {vr(vXr,2)}, v{vXO}, s[{sX}:{sX+3}], s{sOX} offen', 'x')
    m, t = vT, vT2
    a(f'''
    s_add_u32 s{sOKM}, s{sOKM}, {MB}
    v_add_u32 v{vTh}, 4, v{vTh}
    v_max3_f32 v{m}, v{vS}, v{vS+1}, v{vS+2}
    v_max3_f32 v{t}, v{vS+3}, v{vS+4}, v{vS+5}
    v_max3_f32 v{m}, v{m}, v{vS+6}, v{vS+7}
    v_max_f32 v{m}, v{m}, v{t}
    ''')
    for ks in range(4):
        a.wv('k%d' % ks)
        a(mm(vr(vSm,4), vr(vKm+4*ks,4), vr(vQ+4*ks,4), vr(vSm,4) if ks else 0))
    a(f'v_max3_f32 v{m}, v{m}, v{vSm}, v{vSm+2}')
    for p in ('16', '32'):
        a(f'v_mov_b32 v{t}, v{m}\nv_permlane{p}_swap_b32 v{m}, v{t}\nv_max_f32 v{m}, v{m}, v{t}')
    a(f'v_mul_f32 v{m}, s{sC}, v{m}')
    E = [vS+i for i in range(8)] + [vSm, vSm+2]
    for e in E: a(f'v_fma_f32 v{e}, v{e}, s{sC}, -v{m}')
    for e in E: a(f'v_exp_f32 v{e}, v{e}')
    for i in range(4): a(f'v_cvt_pk_bf16_f32 v{vP+i}, v{vS+2*i}, v{vS+2*i+1}')
    a(f'v_cvt_pk_bf16_f32 v{vB0}, v{vSm}, v{vSm+2}\nv_mov_b32 v{vB1+1}, v{vB0}')
    O = vY
    for k in range(4): a(mm(vr(O+4*k,4), vr(vV+4*k,4), vr(vP,4), 0))
    a.wv('vm')
    for k in range(4): a(mm(vr(O+4*k,4), vr(vVm+2*(k>>1),2), vr(vB1 if k & 1 else vB0,2), vr(O+4*k,4), 16))
    a(f'v_add_f32 v{m}, v{vS}, v{vS+1}\nv_add_f32 v{t}, v{vS+2}, v{vS+3}')
    for e in E[4:7]: a(f'v_add_f32 v{m}, v{m}, v{e}')
    for e in E[7:]: a(f'v_add_f32 v{t}, v{t}, v{e}')
    a(f'v_add_f32 v{m}, v{m}, v{t}')
    for p in ('16', '32'):
        a(f'v_mov_b32 v{t}, v{m}\nv_permlane{p}_swap_b32 v{m}, v{t}\nv_add_f32 v{m}, v{m}, v{t}')
    a(f'v_rcp_f32 v{m}, v{m}')
    for i in range(16): a(f'v_mul_f32 v{O+i}, v{O+i}, v{m}')
    for i in range(8): a(f'v_cvt_pk_bf16_f32 v{O+16+i}, v{O+2*i}, v{O+2*i+1}')
    a.ds(f'ds_write_b128 v{vOW}, {vr(O+16,4)} offset:{L_OF}')
    a.ds(f'ds_write_b128 v{vOW}, {vr(O+20,4)} offset:{L_OF+1024}')
    a.wl(); a('s_barrier')
    for f in range(8): a.ds(f'ds_read_b128 {vr(vF+4*f,4)}, v{vL} offset:{L_OF+f*1024}', 'F%d' % f)
    tacc(a, cfg, 7)
    qkvload(a)
    proj(a, aWo, 4, sPY, st)
    tacc(a, cfg, 8)
    hflag(a, 0, st)
    tacc(a, cfg, 9)
    a(f'''
    v_lshlrev_b32 v{vX2}, 16, v{vXr}
    v_and_b32 v{vX2+1}, 0xffff0000, v{vXr}
    v_lshlrev_b32 v{vX2+2}, 16, v{vXr+1}
    v_and_b32 v{vX2+3}, 0xffff0000, v{vXr+1}
    ''')
    hpoll(a, L+'A', 0, 32)
    tacc(a, cfg, 10)
    reduce(a, sPY, 8)
    for i in range(4): a(f'v_fmac_f32 v{vX2+i}, v{vGa+i}, v{vS+i}')
    s1, s2 = vS, vS+1
    a(f'''
    v_add_f32 v{s1}, v{vX2}, v{vX2+1}
    v_mul_f32 v{s2}, v{vX2}, v{vX2}
    v_add_f32 v{s1}, v{s1}, v{vX2+2}
    v_fmac_f32 v{s2}, v{vX2+1}, v{vX2+1}
    v_add_f32 v{s1}, v{s1}, v{vX2+3}
    v_fmac_f32 v{s2}, v{vX2+2}, v{vX2+2}
    v_fmac_f32 v{s2}, v{vX2+3}, v{vX2+3}
    ''')
    for r in (8, 4, 2, 1):
        a(f'v_add_f32_dpp v{s1}, v{s1}, v{s1} row_ror:{r} {dp}\nv_add_f32_dpp v{s2}, v{s2}, v{s2} row_ror:{r} {dp}')
    a(f'''
    v_lshrrev_b32 v{t}, 4, v0
    v_lshlrev_b32 v{t}, 3, v{t}
    v_mov_b32 v{m}, 0
    ''')
    a.ds(f'ds_write_b64 v{t}, {vr(s1,2)} offset:{L_ST}')
    a.wl(); a('s_barrier')
    for w in range(4): a.ds(f'ds_read_b128 {vr(vF+4*w,4)}, v{m} offset:{L_ST+32*w}')
    a.wl()
    for k in range(2):
        a(f'''
        v_add_f32 v{vF+k}, v{vF+k}, v{vF+2+k}
        v_add_f32 v{vF+4+k}, v{vF+4+k}, v{vF+6+k}
        v_add_f32 v{vF+8+k}, v{vF+8+k}, v{vF+10+k}
        v_add_f32 v{vF+12+k}, v{vF+12+k}, v{vF+14+k}
        ''')
    for k in range(2): a(f'v_add_f32 v{vF+k}, v{vF+k}, v{vF+4+k}\nv_add_f32 v{vF+8+k}, v{vF+8+k}, v{vF+12+k}')
    a(f'''
    v_add_f32 v{s1}, v{vF}, v{vF+8}
    v_add_f32 v{s2}, v{vF+1}, v{vF+9}
    v_mul_f32 v{s1}, {f32(1/512)}, v{s1}
    v_mul_f32 v{s2}, {f32(1/512)}, v{s2}
    v_fma_f32 v{s2}, -v{s1}, v{s1}, v{s2}
    v_max_f32 v{s2}, 0, v{s2}
    v_add_f32 v{s2}, {f32(1e-5)}, v{s2}
    v_rsq_f32 v{s2}, v{s2}
    ''')
    for i in range(4): a(f'v_sub_f32 v{vS+4+i}, v{vX2+i}, v{s1}')
    for i in range(4): a(f'v_mul_f32 v{vS+4+i}, v{vS+4+i}, v{s2}')
    for i in range(4): a(f'v_fma_f32 v{vS+4+i}, v{vS+4+i}, v{vCb+i}, v{vSb+i}')
    a(f'v_cvt_pk_bf16_f32 v{vS}, v{vS+4}, v{vS+5}\nv_cvt_pk_bf16_f32 v{vS+1}, v{vS+6}, v{vS+7}')
    a.vm(f'buffer_store_dwordx2 {vr(vS,2)}, v{vHW}, {W}, s{sH2} offen {st}')
    hflag(a, 1, st)
    tacc(a, cfg, 11)
    a(f's_cmp_ge_u32 s{S_RANK}, 24\ns_cbranch_scc1 {L}NOF')
    hpoll(a, L+'B', 1, 32)
    tacc(a, cfg, 12)
    a(f's_add_u32 s{sT}, s{sH2}, 4096')
    for f in range(8): a.vm(f'buffer_load_dwordx4 {vr(vF+4*f,4)}, v{vTR}, {W}, s{sH2 if f < 4 else sT} offen offset:{(f&3)*1024} sc1', 'h%d' % f)
    for ks in range(4):
        for U in range(2):
            a.wv('h%d' % (2*ks+U))
            for T in range(4):
                d = vr(vY+16*U+4*T,4)
                a(mm(d, vr(aW1+(ks*4+T)*4,4,'a'), vr(vF+(2*ks+U)*4,4), d if ks else 0))
    for f in range(8): a.ds(f'ds_write_b128 v{vTR}, {vr(vY+4*f,4)} offset:{L_T+f*1024}')
    a.wl(); a('s_barrier')
    for w in range(4):
        for k in range(2): a.ds(f'ds_read_b128 {vr(vF+8*w+4*k,4)}, v{vOW} offset:{L_T+w*8192+k*1024}', 't%d' % w)
    a(f's_mov_b32 s{sT}, {f32(-LOG2E)}')
    a.wl('t1')
    for i in range(8): a(f'v_add_f32 v{vF+i}, v{vF+i}, v{vF+8+i}')
    a.wl('t3')
    for i in range(8): a(f'v_add_f32 v{vF+16+i}, v{vF+16+i}, v{vF+24+i}')
    for i in range(8): a(f'v_add_f32 v{vF+i}, v{vF+i}, v{vF+16+i}')
    for i in range(8): a(f'v_mul_f32 v{vF+8+i}, s{sT}, v{vF+i}')
    for i in range(8): a(f'v_exp_f32 v{vF+8+i}, v{vF+8+i}')
    for i in range(8): a(f'v_add_f32 v{vF+8+i}, 1.0, v{vF+8+i}')
    for i in range(8): a(f'v_rcp_f32 v{vF+8+i}, v{vF+8+i}')
    for i in range(8): a(f'v_mul_f32 v{vF+i}, v{vF+i}, v{vF+8+i}')
    for i in range(4): a(f'v_cvt_pk_bf16_f32 v{vF+16+i}, v{vF+2*i}, v{vF+2*i+1}')
    a.ds(f'ds_write_b128 v{vOW}, {vr(vF+16,4)} offset:{L_TF}')
    a.wl(); a('s_barrier')
    for f in range(4): a.ds(f'ds_read_b128 {vr(vF+4*f,4)}, v{vL} offset:{L_TF+f*2048}', 'F%d' % f)
    proj(a, aW2, 2, sPZ, st)
    hflag(a, 2, st)
    tacc(a, cfg, 13)
    a(f'{L}NOF:')
    hpoll(a, L+'C', 2, 24)
    reduce(a, sPZ, 6)
    for i in range(4): a(f'v_fmac_f32 v{vX2+i}, v{vGb+i}, v{vS+i}')
    a(f'''
    v_cvt_pk_bf16_f32 v{vS}, v{vX2}, v{vX2+1}
    v_cvt_pk_bf16_f32 v{vS+1}, v{vX2+2}, v{vX2+3}
    s_mov_b32 exec_hi, 0
    buffer_store_dwordx2 {vr(vS,2)}, v{vXO}, s[{sOut}:{sOut+3}], s{sOX} offen
    s_mov_b64 exec, -1
    s_add_u32 s{sOX}, s{sOX}, 0x20000
    s_cmp_lt_u32 s{sIt}, 16
    s_cbranch_scc1 {L}LOOP
    ''')
    tabs(a, cfg, 5); tdump(a, cfg)
    a('s_branch KEND')

def xrole(a, cfg):
    xprologue(a, cfg)
    a(f's_cmp_eq_u32 s{S_PURE}, 0\ns_cbranch_scc1 XS_LOOP')
    xloop(a, '', 'XP_', cfg)
    xloop(a, 'sc1', 'XS_', cfg)
```

```python
import sys
sys.path.insert(0,'gen')
from hl import *
from common import *
import main as mn
if __name__ == '__main__':
    local = not os.path.exists('/dev/kfd')
    cfgs = eval(sys.argv[1]) if len(sys.argv) > 1 else [dict()]
    if not local:
        from emu import *
        inp = inputs(0); E = mine(inp)
        bufs = []
        for k in ORDER:
            v = inp[k]
            arr = tobf(v) if torch.is_tensor(v) else np.array([v], np.int32)
            bufs.append(cl.DeviceBuffer.from_numpy(np.ascontiguousarray(arr)))
        wsn = np.random.randint(0, 65536, size=(81*MB//2,), dtype=np.uint16)
        ws = cl.DeviceBuffer(WS_BYTES); out = cl.DeviceBuffer(2*MB); dbg = cl.DeviceBuffer(256)
        def rd(off, n, dt=np.uint16):
            r = np.zeros(n, dt)
            cl._check(cl._hip.hipMemcpy(r.ctypes.data_as(ctypes.c_void_p), ctypes.c_void_p(ws.ptr + off), r.nbytes, 2)); return r
        def rel(x, y, n=64):
            y = y.reshape(n, -1); e = x.reshape(n, -1) - y
            return np.sqrt((e**2).sum(1) / (y**2).sum(1))
        hl_ = E['h'].numpy().reshape(64,2,16,16,4,8).transpose(0,3,1,4,2,5)
        lk = {k: frombf((layV if k == 'V' else layK)(tobf(E[k]))) for k in 'KVQ'}
        tm = Timer()
    for i, c in enumerate(cfgs):
        co = build(wrap(mn.body(c), lds=160*1024, vgpr=512, acc=256, nptr=15), 'k_kernel', 15, f'full{i}')
        if local:
            print(cl.address_register_problem(co, 'k_kernel')); continue
        k = cl.AsmKernel(co, 'k_kernel')
        for rep in range(c.get('reps',1)):
            cl._check(cl._hip.hipMemcpy(ctypes.c_void_p(ws.ptr), wsn.ctypes.data_as(ctypes.c_void_p), wsn.nbytes, 1))
            memset(dbg, 0); memset(out, 0xff); sync()
            tm.start()
            k.launch((256+c.get('extra',0),1,1), (256,1,1), cl.pack_ptr_kernargs([b.ptr for b in bufs] + [out.ptr, dbg.ptr, ws.ptr]), 160*1024)
            t = tm.stop(); sync()
            d = dbg.to_numpy(np.uint32, (64,))
            o = frombf(out.to_numpy(np.uint16, (2048*512,)))
            ro = rel(o, E['out'].numpy())
            print(c, 'us %.1f' % t, 'out rel max %.4f' % np.nanmax(ro), 'nan', int(np.isnan(o).sum()))
            if c.get('chk', 1):
                print('  dbg', d[:8], d[16:25], d[32:41], d[48:52])
                print('  mod', rel(rd(WS_MOD, 3072, np.float32), E['mod'].numpy(), 6))
                S = [0,1,2,3,4,5,10,62,63]
                print('  h', np.round(rel(frombf(rd(WS_H, MB)), hl_.ravel())[S], 4))
                for nm, off in (('K',WS_KC),('V',WS_VC),('Q',WS_QC)): print('  '+nm, np.round(rel(frombf(rd(off, 8*MB)), lk[nm].ravel())[S], 4))
                km, vm = unlayKM(rd(WS_KM, 8*MB).reshape(64,32,4,2,64,8))
                print('  km', np.round(rel(frombf(km), E['km'].numpy())[S], 4), 'vm', np.round(rel(frombf(vm), E['vm'].numpy())[S], 4))
                h2l = E['h2'].numpy().reshape(64,2,16,16,4,8).transpose(0,3,1,4,2,5)[60:64]
                print('  h2(60..63)', np.round(rel(frombf(rd(WS_H2, 4*16384)), h2l.ravel(), 4), 4))
                print('  out', np.round(ro[S], 4))
                print('  flags', rd(WS_FL, 4096, np.uint32).reshape(4,32,32)[:,0,:4].tolist(), rd(WS_XF, 2048, np.uint32).reshape(4,4,4,32)[:,:3,0,0].tolist())
            if c.get('time'):
                T = rd(WS_TM, 16384, np.uint32).reshape(-1,16)
                T = T[:256]; t0 = T[:,14].min()
                if c.get('trace'):
                    R = rd(WS_TM + 65536, 64*1024, np.uint32).reshape(64,32,32)[:,:,:4].astype(np.int64)
                    mx = R.reshape(64,-1).max(1); mn_ = R.reshape(64,-1).min(1); dd = np.diff(mx)
                    print('  steps', dd.tolist()[:6], 'mean[4:] %.0f' % dd[4:].mean(), end=''); print('  median', np.median(dd), 'spread', np.median(mx-mn_), 'wavespread', np.median(R.max(2)-R.min(2)))
                if c.get('brief'):
                    print('  cyc/step %.0f' % (T[0,11]/63.3), np.round(T[0,0:8]/63).astype(int), 'polls', np.round(T[:32,8:10].mean(0)/63,2), 'start', T[0,10], 'rt end', int((T[:,15]-t0).max())); continue
                print('  chain start', T[:3,10], 'cyc/step %.0f' % (T[0,11]/63.3), 'end', T[0,10]+T[0,11], 'extra', T[0,12:14])
                print('  rt entry(min,max per team)', [(int((T[32*k:32*k+32,14]-t0).min()), int((T[32*k:32*k+32,14]-t0).max())) for k in range(8)])
                print('  rt end', [int((T[32*k:32*k+32,15]-t0).max()) for k in range(8)])
                for r in range(2): print('     ex,q,kv,att,O,h1,h2,vm:', np.round(T[r,0:8]/63).astype(int), 'polls', np.round(T[r,8:10]/63,2))
                for nm, r in (('K',32),('V',64),('Q',96),('X4',128),('X5',160),('X7',224),('X7r31',255)): print('    ', nm, T[r,:6], (T[r,6:14]//16) if r >= 128 else '')
                if c.get('xt'):
                    print('   X4 min', T[128:160,6:13].min(0), T[128:160,0:4].min(0)); print('   X4 max', T[128:160,6:13].max(0), T[128:160,0:4].max(0))
                    print('   X max', T[128:256,0:4].max(0), 'QKV max', T[32:128,0:5].max(0), 'chain max', T[:32,12:14].max(0))
            sys.stdout.flush()
        k.unload()
```

```python
from common import *
vX, vLr, vSmW, vOW, vL1, vL2, vPW, vPR, vMW, vIdx, vmE, vmO = range(12)
vSel0, vSel1, vDel = 12, 14, 16
vqT, vkT, vvm, vFl, vT = 20, 24, 28, 30, 31
vM, vSt, vK, vV = 32, 64, 80, 88
vAq, vAk, vAv = 104, 112, 120
sWq, sWk, sWv, sWo = 20, 24, 28, 32
sN, sCnt, sOK, sOV, sOKM, sOM, sP1, sC, sOdd, sTmp = 36, 37, 38, 39, 40, 41, 42, 43, 44, 46
sT0 = 48
sRdy, sFlK, sFlP = 56, 57, 58
L_M, L_SX, L_SM, L_O = 0, 8192, 16384, 17408
def slot(i): return ((i + 2) % 10) * 16384
O_LDS = [(0,0,0),(0,0,1),(0,1,2),(0,1,3)]
opreg = {}
LP = [('q',0),('q',1),('q',5),('k',4),('v',2),('v',7)]
def _alloc():
    lst = []
    for m in 'qkv':
        for kc in range(8):
            if (m,kc) in LP: continue
            for T in range(2): lst.append((m,kc,T))
    for kc in range(2):
        for Q in range(2):
            for t in range(4):
                if (kc,Q,t) not in O_LDS: lst.append(('o',kc,Q,t))
    for i,k in enumerate(lst): opreg[k] = ('a', 8*i) if i < 32 else ('v', 128 + 8*(i-32))
_alloc()
chunks = [('o',kc,u,nu) for kc in range(2) for u in range(2) for nu in range(2)]
for m in 'qkv':
    for j in (0,1,4,5):
        if (m,j) not in LP and (m,j^2) not in LP: chunks += [(m,j),(m,j^2)]
for m,j in LP: chunks += [(m,j),(m,j^2)]
assert len(set(chunks)) == 32
def pair_addr(key):
    if key == 'oA': a = 2*16384
    elif key == 'oB': a = 3*16384
    else: a = (4 + LP.index(key))*16384
    return (vX, a) if a < 65536 else ((vL1, a-65536) if a < 131072 else (vL2, a-131072))

ABL = set(); OPT = set()
def stage(a, key):
    if 'nostage' in ABL: return
    b, o = pair_addr(key)
    for T in range(2):
        for h in range(2):
            a.ds('ds_read_b128 %s, v%d offset:%d' % (vr((vM+16 if key == ('q',0) else vSt)+8*T+4*h,4), b, o + T*8192 + h*1024), 'st')

def prologue(a, cfg):
    a('''
    CH:
    s_load_dwordx4 s[20:23], s[0:1], 16
    s_load_dwordx4 s[28:31], s[0:1], 32
    s_load_dwordx2 s[12:13], s[0:1], 8
    v_and_b32 v40, 63, v0          ; lane
    v_and_b32 v41, 15, v0          ; c
    v_bfe_u32 v42, v0, 4, 2        ; g
    ''')
    a(f'''
    v_lshrrev_b32 v45, 2, v41
    v_lshlrev_b32 v43, 13, v45
    v_lshl_add_u32 v43, v42, 11, v43
    v_and_b32 v44, 3, v40
    v_lshl_add_u32 v43, v44, 4, v43
    s_lshl_b32 s36, s{S_WAVE}, 16
    s_lshl_b32 s37, s{S_RANK}, 6
    s_add_u32 s36, s36, s37
    s_add_u32 s36, s36, {WS_P}
    v_add_u32 v{vPW}, s36, v43
    v_and_b32 v43, 1, v41
    v_lshlrev_b32 v43, 5, v43
    v_lshl_add_u32 v43, v45, 4, v43
    v_lshl_add_u32 v43, v42, 2, v43
    s_lshl_b32 s36, s{S_RANK}, 8
    s_lshl_b32 s37, s{S_WAVE}, 6
    s_add_u32 s36, s36, s37
    s_add_u32 s36, s36, {WS_M}
    v_add_u32 v43, s36, v43
    v_and_b32 v44, 10, v41
    v_cmp_eq_u32 vcc, 0, v44
    v_mov_b32 v44, {OOB}
    v_cndmask_b32 v{vMW}, v44, v43, vcc
    s_lshl_b32 s36, s{S_RANK}, 7
    s_lshl_b32 s37, s{S_WAVE}, 2
    s_add_u32 s36, s36, s37
    s_add_u32 s36, s36, {WS_FL}
    v_lshlrev_b32 v43, 12, v40
    v_sub_u32 v43, s36, v43          ; lane 1 points one page lower (spare page; K progress word when reading)
    v_cmp_gt_u32 vcc, 2, v40
    v_cndmask_b32 v{vFl}, v44, v43, vcc
    v_mov_b32 v112, 0
    v_mov_b32 v113, 0
    v_mov_b32 v114, 0
    v_mov_b32 v115, 0
    s_mov_b32 s{sP1}, 32768
    ''')
    a.vm('buffer_store_dwordx4 v[112:115], v%d, s[%d:%d], 0 offen sc1' % (vPW, S_WS, S_WS+3), 'z')
    a.vm('buffer_store_dwordx4 v[112:115], v%d, s[%d:%d], s%d offen sc1' % (vPW, S_WS, S_WS+3, sP1), 'z')
    a.vm('buffer_store_dword v112, v%d, s[%d:%d], 0 offen sc1' % (vMW, S_WS, S_WS+3), 'z')
    a.vm('buffer_store_dword v112, v%d, s[%d:%d], 0 offen sc1' % (vFl, S_WS, S_WS+3), 'z')
    a('''
    s_waitcnt lgkmcnt(0)
    s_mov_b32 s24, s22
    s_mov_b32 s25, s23
    s_mov_b32 s32, s30
    s_mov_b32 s33, s31
    ''')
    for s in (sWq, sWk, sWv, sWo): a('s_mov_b32 s%d, 0x400000\ns_mov_b32 s%d, 0x00020000' % (s+2, s+3))
    a('s_mov_b32 s14, 8192\ns_mov_b32 s15, 0x00020000')
    a(f'''
    s_lshl_b32 s36, s{S_WAVE}, 1
    v_lshrrev_b32 v43, 5, v40
    v_add_u32 v43, s36, v43         ; key = 2w + (l>>5)
    v_lshrrev_b32 v44, 1, v41
    v_xor_b32 v43, v43, v44
    v_and_b32 v44, 4, v43
    v_lshlrev_b32 v43, 5, v43
    v_lshl_add_u32 v43, v44, 19, v43
    v_and_b32 v44, 1, v40
    v_lshl_add_u32 v43, v44, 4, v43
    v_lshl_add_u32 v43, v42, 13, v43
    s_lshl_b32 s36, s{S_WAVE}, 15
    s_lshl_b32 s37, s{S_RANK}, 8
    s_add_u32 s36, s36, s37
    v_add_u32 v124, s36, v43
    v_xor_b32 v125, 0x100000, v124
    v_xor_b32 v126, 0x200000, v124
    v_xor_b32 v127, 0x300000, v124
    s_and_b32 s36, s{S_WAVE}, 1
    s_lshl_b32 s36, s36, 15
    s_lshr_b32 s37, s{S_WAVE}, 1
    s_lshl_b32 s37, s37, 12
    s_add_u32 s36, s36, s37
    s_lshl_b32 s37, s{S_RANK}, 17
    s_add_u32 s36, s36, s37
    v_lshlrev_b32 v43, 4, v40
    v_add_u32 v97, s36, v43
    v_xor_b32 v98, 16, v97
    v_xor_b32 v99, 0x80, v97
    v_add_u32 v99, {16384-2048}, v99
    v_xor_b32 v100, 16, v99
    s_lshl_b32 s38, s{S_WAVE}, 10     ; w*1024
    s_lshl_b32 s39, s{S_WAVE}, 12     ; w*4096
    ''')
    NT = 'nt' if 'nt' in OPT else ''
    def dma(i):
        ch = chunks[i]
        if ch[0] == 'o':
            _, kc, u, nu = ch
            a('s_add_u32 m0, s39, %d' % slot(i))
            a('s_mov_b32 s40, %d' % ((64*kc + 8*u + 2*nu)*1024))
            for r in range(4):
                a.vm('buffer_load_dwordx4 v%d, s[%d:%d], s40 offen offset:%d %s lds' % (97+r, sWo, sWo+3, r*1024, NT), i)
        else:
            s = {'q':sWq,'k':sWk,'v':sWv}[ch[0]]
            for m in range(4):
                a('s_add_u32 m0, s38, %d' % (slot(i) + m*4096))
                a('s_mov_b32 s40, %d' % ((ch[1]&1)*524288 + m*131072))
                a.vm('buffer_load_dwordx4 v%d, s[%d:%d], s40 offen %s lds' % (124 + (ch[1]>>1), s, s+3, NT), i)
    for i in range(9): dma(i)
    a(f'''
    v_lshlrev_b32 v{vLr}, 4, v40
    s_lshl_b32 s36, s{S_WAVE}, 11
    v_add_u32 v{vX}, s36, v{vLr}
    v_add_u32 v{vL1}, 0x10000, v{vX}
    v_add_u32 v{vL2}, 0x20000, v{vX}
    s_lshl_b32 s36, s{S_WAVE}, 2
    v_add_u32 v{vSmW}, s36, v{vLr}
    s_lshr_b32 s36, s{S_WAVE}, 1
    s_lshl_b32 s36, s36, 10
    s_and_b32 s37, s{S_WAVE}, 1
    s_lshl_b32 s37, s37, 3
    s_add_u32 s36, s36, s37
    v_add_u32 v{vOW}, s36, v{vLr}
    v_and_b32 v44, 3, v40
    ; P read: j*8192 + w*2048 + ((l&3)+4g)*64 + ((l>>2)&3)*16
    v_lshl_add_u32 v43, v42, 2, v44
    v_lshlrev_b32 v43, 6, v43
    v_lshrrev_b32 v45, 2, v41
    v_lshl_add_u32 v43, v45, 4, v43
    s_lshl_b32 s36, s{S_RANK}, 13
    s_lshl_b32 s37, s{S_WAVE}, 11
    s_add_u32 s36, s36, s37
    s_add_u32 s36, s36, {WS_P}
    v_add_u32 v{vPR}, s36, v43
    ; masks
    v_and_b32 v43, 1, v41
    v_sub_u32 v{vmO}, 0, v43
    v_not_b32 v{vmE}, v{vmO}
    v_and_b32 v{vIdx}, 0xaaaa, v{vmO}
    v_add_u32 v{vIdx}, 0x4444, v{vIdx}
    s_mov_b32 s{sOdd}, 0xaaaaaaaa
    s_mov_b32 s{sOdd+1}, 0xaaaaaaaa
    v_lshrrev_b32 v43, 2, v41
    v_cmp_eq_u32 vcc, v43, v42
    v_bfe_u32 v43, v41, 1, 1
    v_lshlrev_b32 v43, 4, v43
    v_mov_b32 v44, 0x3f80
    v_lshlrev_b32 v43, v43, v44
    v_cndmask_b32 v{vSel0}, 0, v43, vcc
    v_mov_b32 v{vSel0+1}, 0
    v_mov_b32 v{vSel1}, 0
    v_mov_b32 v{vSel1+1}, v{vSel0}
    v_and_b32 v43, 1, v41
    v_lshlrev_b32 v43, 4, v43
    v_lshlrev_b32 v43, v43, v44
    v_bfe_u32 v45, v41, 1, 2
    ''')
    for i in range(4):
        a('v_cmp_eq_u32 vcc, %d, v45\nv_cndmask_b32 v%d, 0, v43, vcc' % (i, vDel+i))
    a(f'''
    v_lshrrev_b32 v43, 2, v41        ; r
    v_and_b32 v44, 3, v41            ; cc
    v_and_b32 v45, 1, v42            ; g&1
    v_lshrrev_b32 v46, 1, v42        ; g>>1
    v_lshl_add_u32 v47, v43, 1, v45  ; key = 4(r>>1)+2(r&1)+(g&1) = 2r + (g&1)
    v_lshlrev_b32 v48, 9, v47
    v_lshl_add_u32 v48, v46, 12, v48
    s_lshl_b32 s36, s{S_WAVE}, 1
    v_xor_b32 v47, s36, v47
    v_lshl_add_u32 v48, v47, 5, v48
    v_lshl_add_u32 v101, v44, 3, v48
    s_and_b32 s36, s{S_WAVE}, 1
    s_lshl_b32 s36, s36, 14
    v_add_u32 v101, s36, v101
    v_xor_b32 v102, 32, v101
    v_xor_b32 v96, 0x4000, v101
    v_xor_b32 v97, 0x4000, v102
    v_lshl_add_u32 v47, v42, 2, v43  ; row = 4g + r
    v_lshlrev_b32 v47, 10, v47
    v_lshl_add_u32 v47, v44, 5, v47
    s_lshl_b32 s36, s{S_WAVE}, 8
    v_add_u32 v47, s36, v47
    v_and_b32 v48, 1, v43
    v_lshl_add_u32 v47, v48, 4, v47
    v_lshrrev_b32 v48, 1, v43
    v_lshl_add_u32 v104, v48, 7, v47
    v_xor_b32 v105, 16, v104
    v_xor_b32 v106, 0x80, v104
    v_xor_b32 v107, 0x90, v104
    ''')
    a(f'''
    v_lshrrev_b32 v43, 1, v41
    v_lshlrev_b32 v43, 10, v43
    v_lshl_add_u32 v43, v42, 5, v43
    v_and_b32 v44, 1, v41
    v_lshl_add_u32 v43, v44, 4, v43
    s_lshl_b32 s36, s{S_WAVE}, 8
    v_add_u32 v103, s36, v43
    ''')
    def rd_base(i, regs):
        s = slot(i)
        hi = s // 65536 * 65536
        if hi == 0: return regs, s
        t = [108 + k for k in range(len(regs))]
        for x, y in zip(t, regs): a('v_add_u32 v%d, %d, v%d' % (x, hi, y))
        return t, s - hi
    def writeback(i):
        b, o = pair_addr(LP[i]); base = 64 + 16*(i & 1)
        for T in range(2):
            for h in range(2):
                a.ds('ds_write_b128 v%d, %s offset:%d' % (b, vr(base+8*T+4*h,4), o + T*8192 + h*1024))
    a.wv('z'); a('s_barrier')
    arrive(a, 112, 113, 'CH_AR', chain=True)
    for i in range(32):
        if i < 8:
            a.wv(i); a.wl(); a('s_barrier')
            dma(i+9)
        elif i % 2 == 0:
            a.wv(i+1); a.wl(); a('s_barrier')
            if 8 < i < 24: dma(i+8)
            if i < 24: dma(i+9)
            if i == 24: writeback(0)
            if i >= 24: writeback((i-22)//2)
            regs4, o4 = rd_base(i, [101,102,96,97])
        ch = chunks[i]
        if ch[0] == 'o':
            _, kc, u, nu = ch
            regs, o = rd_base(i, [104,105,106,107])
            for Q in range(2):
                for t in range(4):
                    if (kc,Q,t) in O_LDS: p, b = 'v', 32 + 8*O_LDS.index((kc,Q,t))
                    else: p, b = opreg[('o',kc,Q,t)]
                    a.ds('ds_read_b64_tr_b16 %s, v%d offset:%d' % (vr(b+4*u+2*nu,2,p), regs[2*Q+(t>>1)], o + 8*(t&1)))
        else:
            regs, o = regs4[2*(i&1):], o4
            for T in range(2):
                if ch in LP: p, b = 'v', 64 + 16*(LP.index(ch) & 1) + 8*T
                else: p, b = opreg[(ch[0],ch[1],T)]
                for u in range(2):
                    for nu in range(2):
                        a.ds('ds_read_b64_tr_b16 %s, v%d offset:%d' % (vr(b+4*u+2*nu,2,p), regs[T], o + (32*u+nu)*256))
        if i == 23:
            a.vm('buffer_load_dwordx4 v[116:119], v103, s[12:15], 0 offen', 'm0')
            a.vm('buffer_load_dwordx4 v[120:123], v103, s[12:15], 0 offen offset:128', 'm0')
    a.wl(); a('s_barrier')
    writeback(5)
    for k in range(4):
        for h in range(2):
            a.ds('ds_write_b128 v%d, %s offset:%d' % (vX, vr(32+8*k+4*h,4), 32768 + (k>>1)*16384 + (k&1)*8192 + h*1024))
    a.wv(); a.wl()
    a('s_mov_b32 s36, 0x05040100\ns_mov_b32 s37, 0x07060302')
    for k in range(2):
        s = 116 + 4*k; d = vM + 4*k
        a(f'''
        v_perm_b32 v{d}, v{s+2}, v{s}, s36
        v_perm_b32 v{d+1}, v{s+2}, v{s}, s37
        v_perm_b32 v{d+2}, v{s+3}, v{s+1}, s36
        v_perm_b32 v{d+3}, v{s+3}, v{s+1}, s37
        ''')
    stage(a, ('q',0)); stage(a, ('q',1))
    a(f'''
    s_lshl_b32 s36, s{S_RANK}, 13
    s_add_u32 s{sOK}, s36, {WS_KC}
    s_add_u32 s{sOV}, s36, {WS_VC}
    s_add_u32 s{sOKM}, s36, {WS_KM - 262144}
    s_mov_b32 s{sOM}, {WS_M}
    s_mov_b32 s{sC}, {f32(128**-0.5*LOG2E)}
    s_mov_b32 s{sN}, 0
    ''')
    for r in range(vAq, 128, 2): a('v_mov_b64 v[%d:%d], 0' % (r, r+1))
    a.wl()
    tabs(a, cfg, 12)
    dbgpoll(a, vqT, vqT+1, 'CH_BP')
    a(f'''
    s_cmp_eq_u32 s98, 0
    s_cbranch_scc1 FALLBACK
    s_movk_i32 s{sFlP}, 0x2000
    s_mov_b32 s{sN}, -1
    ''')
    rdy(a, 'CH_R0')
    tabs(a, cfg, 13)
    a(f's_mov_b32 s{sN}, 0')
    a.vm(f'buffer_load_dwordx4 {vr(vK,4)}, v{vX}, s[4:7], s{sOK} offen sc1')
    a.vm(f'buffer_load_dwordx4 {vr(vK+4,4)}, v{vX}, s[4:7], s{sOK} offen offset:1024 sc1')
    a.vm(f'buffer_load_dwordx4 {vr(vV,4)}, v{vX}, s[4:7], s{sOV} offen sc1')
    a.vm(f'buffer_load_dwordx4 {vr(vV+4,4)}, v{vX}, s[4:7], s{sOV} offen offset:1024 sc1')
    a(f's_add_u32 s{sOV}, s{sOV}, 262144\ns_add_u32 s{sOK}, s{sOK}, 262144\nv_mov_b32 v{vT}, 0')
    for j in range(1, 4): a(f'v_xor_b32 v{vqT+j}, {j << 11}, v{vX}')
    a.wv(); a.wl()

def rdy(a, L):
    a(f'''
    s_mov_b32 s{sCnt}, 0
    {L}:
    buffer_load_dword v{vqT}, v{vFl}, s[4:7], s{sFlP} offen sc1
    s_add_u32 s{sCnt}, s{sCnt}, 1
    s_cmp_gt_u32 s{sCnt}, {POLLMAX}
    s_cbranch_scc1 KEND
    s_waitcnt vmcnt(0)
    v_readlane_b32 s{sRdy}, v{vqT}, 0
    v_readlane_b32 s{sFlK}, v{vqT}, 1
    s_min_u32 s{sRdy}, s{sRdy}, s{sFlK}
    s_sub_u32 s{sRdy}, s{sRdy}, 2
    s_cmp_lt_i32 s{sRdy}, s{sN}
    s_cbranch_scc1 {L}
    ''')

def stamp(a, cfg, k):
    if k not in cfg.get('stamps', ()): return
    a.wl(); a('s_memtime s[62:63]\ns_waitcnt lgkmcnt(0)\ns_sub_u32 s80, s62, s81\ns_mov_b32 s81, s62\ns_add_u32 s%d, s%d, s80' % (64+k, 64+k))

def smf(a, m, kc, T):
    if 'no'+m in ABL: return
    acc = {'q':vAq,'k':vAk,'v':vAv}[m] + 4*T
    if (m,kc) in LP: p, b = 'v', (vM+16 if (m,kc) == ('q',0) else vSt) + 8*T
    else: p, b = opreg[(m,kc,T)]
    a('v_smfmac_f32_16x16x64_bf16 %s, %s, %s, v%d' % (vr(acc,4), vr(vM+4*kc,4), vr(b,8,p), vIdx))

def step(a, par, st, cfg, L):
    ph = par ^ 1
    V = vV + 8*par; Vn = vV + 8*(par^1)
    W = 's[4:7]'
    a.dq = []; a.vq = []
    if cfg.get('trace'): a('s_memtime s[62:63]')
    a.ds(f'ds_write_b128 v{vX}, {vr(vM,4)} offset:{L_M}')
    a.ds(f'ds_write_b128 v{vX}, {vr(vM+4,4)} offset:{L_M+1024}')
    def s2(m, j): smf(a,m,j,0); smf(a,m,j,1)
    def vm(x, tag, ab):
        if 'novm' not in ABL and ab not in ABL: a.vm(x, tag)
    s2('q',0); s2('q',1)
    a.wl(); a('s_barrier')
    stamp(a, cfg, 0)
    for j in range(2,8): a.ds(f'ds_read_b128 {vr(vM+4*j,4)}, v{vqT+(j>>1)} offset:{L_M+(j&1)*1024}', 'M%d'%j)
    smf(a,'k',0,0)
    stage(a, ('q',5))
    smf(a,'k',0,1)
    a(f's_cmp_lt_i32 s{sRdy}, s{sN}\ns_cbranch_scc1 {L}RS\n{L}RB:')
    vm(f'buffer_store_dwordx4 {vr(vkT,4)}, v{vX}, {W}, s{sOKM} offen sc1', 'pub', 'nopub')
    smf(a,'k',1,0)
    vm(f'buffer_store_dwordx2 {vr(vvm,2)}, v{vX}, {W}, s{sOKM} offen offset:1024 sc1', 'pub', 'nopub')
    smf(a,'k',1,1)
    vm(f'buffer_store_dword v{vT}, v{vFl}, {W}, 0 offen sc1', 'pub', 'nopub')
    smf(a,'v',0,0)
    vm(f'buffer_load_dword v{vT}, v{vFl}, {W}, s{sFlP} offen sc1', 'fl', 'nopub')
    smf(a,'v',0,1)
    vm(f'buffer_load_dwordx4 {vr(Vn,4)}, v{vX}, {W}, s{sOV} offen sc1', 'V', 'noV')
    smf(a,'v',1,0)
    vm(f'buffer_load_dwordx4 {vr(Vn+4,4)}, v{vX}, {W}, s{sOV} offen offset:1024 sc1', 'V', 'noV')
    smf(a,'v',1,1)
    if cfg.get('trace'):
        a(f's_lshl_b32 s63, s{sN}, 12\ns_add_u32 s63, s63, {WS_TM + 65536 - WS_FL}\nv_mov_b32 v{vqT}, s62')
        a('s_mov_b64 exec, 1'); a.vm(f'buffer_store_dword v{vqT}, v{vFl}, {W}, s63 offen'); a('s_mov_b64 exec, -1')
    for j in range(2,8):
        a.wl('st' if j == 5 else 'M%d'%j)
        s2('q',j)
        if j == 5: stage(a, ('k',4))
    stamp(a, cfg, 1)
    pk = vkT
    dp = 'row_mask:0xf bank_mask:0xf'
    def sums(acc, dst):
        return [f'v_add_f32 v{acc}, v{acc}, v{acc+1}', f'v_add_f32 v{acc+2}, v{acc+2}, v{acc+3}',
                f'v_add_f32 v{acc+4}, v{acc+4}, v{acc+5}', f'v_add_f32 v{acc+6}, v{acc+6}, v{acc+7}',
                f'v_cvt_pk_bf16_f32 v{dst}, v{acc}, v{acc+2}', f'v_cvt_pk_bf16_f32 v{dst+1}, v{acc+4}, v{acc+6}']
    def transp(acc, T):
        a(f'v_mfma_f32_16x16x16_bf16 {vr(acc+4*T,4)}, {vr(pk,2)}, {vr(vSel0+2*T,2)}, 0')
    def cvt4(acc, dst):
        return [f'v_cvt_pk_bf16_f32 v{dst+i}, v{acc+2*i}, v{acc+2*i+1}' for i in range(4)]
    s = sums(vAq, pk); c = cvt4(vAq, vqT)
    s2('k',2)
    a(s[0]); a(s[1]); smf(a,'k',3,0); a(s[2]); a(s[3]); a(s[4]); a(s[5]); smf(a,'k',3,1)
    a.wl('st'); transp(vAq,0); transp(vAq,1)
    s2('k',4)
    stage(a, ('v',2))
    a(c[0]); a(c[1]); smf(a,'k',5,0); a(c[2]); a(c[3]); smf(a,'k',5,1)
    a(f'v_mfma_f32_16x16x32_bf16 {vr(vAq,4)}, {vr(vK,4)}, {vr(vqT,4)}, 0')
    a(f'v_mfma_f32_16x16x32_bf16 {vr(vAq+4,4)}, {vr(vK+4,4)}, {vr(vqT,4)}, 0')
    smf(a,'k',6,0)
    vm(f'buffer_load_dwordx4 {vr(vK,4)}, v{vX}, {W}, s{sOK} offen sc1', 'K', 'noK')
    smf(a,'k',6,1)
    vm(f'buffer_load_dwordx4 {vr(vK+4,4)}, v{vX}, {W}, s{sOK} offen offset:1024 sc1', 'K', 'noK')
    smf(a,'k',7,0)
    for r in range(4): a(f'v_cndmask_b32 v{vAq+r}, v{vAq+r}, v{vAq+4+r}, s[{sOdd}:{sOdd+1}]')
    smf(a,'k',7,1)
    a.ds(f'ds_write_b128 v{vX}, {vr(vAq,4)} offset:{L_SX}', 'sx')
    s = sums(vAk, pk); c = cvt4(vAk, vkT)
    s2('v',3)
    for x in s: a(x)
    a.wl(); a('s_barrier')
    SX = [vAq, vAq+4, vM, vM+4]
    for w in range(4): a.ds(f'ds_read_b128 {vr(SX[w],4)}, v{vLr} offset:{L_SX+w*2048}', 'x%d'%w)
    transp(vAk,0); transp(vAk,1)
    s2('v',2)
    stage(a, ('v',7))
    for x in c: a(x)
    smf(a,'v',4,0)
    a(f'v_mfma_f32_16x16x32_bf16 {vr(vAk,4)}, {vr(vkT,4)}, {vr(vqT,4)}, 0')
    smf(a,'v',4,1)
    a.wl('x1')
    for r in range(4): a(f'v_add_f32 v{vAq+r}, v{vAq+r}, v{vAq+4+r}')
    a(f'v_cndmask_b32 v{vAk}, v{vAk}, v{vAk+2}, s[{sOdd}:{sOdd+1}]')
    a.ds(f'ds_write_b32 v{vSmW}, v{vAk} offset:{L_SM}', 'sm')
    smf(a,'v',5,0)
    a.wl('x3')
    for r in range(4): a(f'v_add_f32 v{vM+r}, v{vM+r}, v{vM+4+r}')
    smf(a,'v',5,1)
    for r in range(4): a(f'v_add_f32 v{vAq+r}, v{vAq+r}, v{vM+r}')
    m, t, sm = vAq+4, vAq+5, vAk+4
    P0, B0, B1, One, Bm, Do, Dl = vAq+6, vM, vM+4, vqT, vqT+2, vAq, vAk
    a.wl(); a('s_barrier')
    a.ds(f'ds_read_b128 {vr(sm,4)}, v{vLr} offset:{L_SM}', 'sm')
    a(f'v_max3_f32 v{m}, v{vAq}, v{vAq+1}, v{vAq+2}\nv_max_f32 v{m}, v{m}, v{vAq+3}')
    smf(a,'v',6,0)
    a(f'v_mov_b32 v{One}, 0x3f803f80')
    a(f'v_max_f32_dpp v{m}, v{m}, v{m} quad_perm:[1,0,3,2] {dp}')
    a(f'v_mov_b32 v{t}, v{m}')
    smf(a,'v',6,1)
    a(f'v_mov_b32 v{One+1}, 0x3f803f80')
    a(f'v_permlane16_swap_b32 v{m}, v{t}\nv_max_f32 v{m}, v{m}, v{t}\nv_mov_b32 v{t}, v{m}')
    s2('v',7)
    a(f'v_permlane32_swap_b32 v{m}, v{t}\nv_max_f32 v{m}, v{m}, v{t}')
    a(f'v_mul_f32 v{m}, s{sC}, v{m}')
    stage(a, 'oA')
    stamp(a, cfg, 2)
    zero = lambda r: a(f'v_mfma_f32_32x32x8_bf16 {vr(r,16)}, {vr(vSel0,2)}, {vr(vSel1,2)}, 0')
    for r in range(4): a(f'v_fma_f32 v{vAq+r}, v{vAq+r}, s{sC}, -v{m}')
    zero(vM+16)
    for r in range(4): a(f'v_exp_f32 v{vAq+r}, v{vAq+r}')
    a.wl('sm')
    a(f'v_add_f32 v{sm}, v{sm}, v{sm+1}\nv_add_f32 v{sm+2}, v{sm+2}, v{sm+3}')
    a(f'v_cvt_pk_bf16_f32 v{P0}, v{vAq}, v{vAq+1}\nv_cvt_pk_bf16_f32 v{P0+1}, v{vAq+2}, v{vAq+3}')
    a(f'v_add_f32 v{sm}, v{sm}, v{sm+2}\nv_fma_f32 v{sm}, v{sm}, s{sC}, -v{m}')
    def bmask(B, mk):
        for i in range(4):
            a(f'v_and_b32_dpp v{B+i}, v{P0+(i&1)}, v{mk} quad_perm:{"[0,0,2,2]" if i<2 else "[1,1,3,3]"} {dp}')
    s = sums(vAv, vvm)
    a(f'v_mfma_f32_16x16x16_bf16 {vr(Dl,4)}, {vr(One,2)}, {vr(P0,2)}, 0')
    bmask(B0, vmE)
    a(f'v_cmp_lt_f32 vcc, {f32(cfg.get("thr", 60.0))}, v{sm}')
    a(s[0])
    a(f'v_mfma_f32_16x16x32_bf16 {vr(Do,4)}, {vr(V,4)}, {vr(B0,4)}, 0')
    bmask(B1, vmO)
    a(f'v_add_f32_dpp v{Dl}, v{Dl}, v{Dl} quad_perm:[1,0,3,2] {dp}')
    a(s[1])
    a(f'v_mfma_f32_16x16x32_bf16 {vr(Do,4)}, {vr(V+4,4)}, {vr(B1,4)}, {vr(Do,4)}')
    a(f's_cbranch_vccnz {L}MX\n{L}MB:')
    a(f'v_exp_f32 v{sm}, v{sm}')
    a(s[2]); a(s[3])
    a(f'v_mov_b32_dpp v{sm+1}, v{sm} quad_perm:[0,0,2,2] {dp}\nv_mov_b32_dpp v{sm+2}, v{sm} quad_perm:[1,1,3,3] {dp}')
    a(f'v_cvt_pk_bf16_f32 v{sm+1}, v{sm+1}, v{sm+2}')
    a(f'v_and_b32 v{Bm}, v{sm+1}, v{vmE}\nv_and_b32 v{Bm+1}, v{sm+1}, v{vmO}')
    a(s[4]); a(s[5])
    a(f'v_mfma_f32_16x16x16_bf16 {vr(Dl,4)}, {vr(One,2)}, {vr(Bm,2)}, {vr(Dl,4)}')
    if par == 1: a(f's_cmp_eq_u32 s{sN}, 63')
    a(f'v_mfma_f32_16x16x16_bf16 {vr(Do,4)}, {vr(vvm,2)}, {vr(Bm,2)}, {vr(Do,4)}')
    if par == 1: a(f's_cbranch_scc1 {L}TAIL')
    zero(vM)
    a(f's_add_u32 s{sOV}, s{sOV}, 262144\ns_add_u32 s{sOK}, s{sOK}, 262144')
    a(f'v_rcp_f32 v{m}, v{Dl}')
    for r in range(4): a(f'v_mul_f32 v{Do+r}, v{Do+r}, v{m}')
    a(f'v_cvt_pk_bf16_f32 v{P0}, v{Do}, v{Do+1}\nv_cvt_pk_bf16_f32 v{P0+1}, v{Do+2}, v{Do+3}')
    a.ds(f'ds_write_b64 v{vOW}, {vr(P0,2)} offset:{L_O}')
    a.wl(); a('s_barrier')
    OA = vAv
    a.ds(f'ds_read_b128 {vr(OA,4)}, v{vLr} offset:{L_O}', 'o0')
    a.ds(f'ds_read_b128 {vr(OA+4,4)}, v{vLr} offset:{L_O+1024}', 'o1')
    stamp(a, cfg, 3)
    def omf(kc, Q, tau):
        if 'noo' in ABL: return
        if (kc,Q,tau) in O_LDS: p, b = 'v', vSt + 8*(tau & 1)
        else: p, b = opreg[('o',kc,Q,tau)]
        a('v_smfmac_f32_16x16x64_bf16 %s, %s, %s, v%d' % (vr(vM+16*Q+4*tau,4), vr(OA+4*kc,4), vr(b,8,p), vIdx))
    def fin(Q, tau):
        acc = vM+16*Q+4*tau; d = vAq+4*Q+tau
        r = [f'v_add_f32 v{acc}, v{acc}, v{acc+1}', f'v_add_f32 v{acc+2}, v{acc+2}, v{acc+3}', f'v_cvt_pk_bf16_f32 v{d}, v{acc}, v{acc+2}']
        if tau == 0: r.append(f'v_or_b32 v{d}, 1, v{d}' if ph else f'v_and_b32 v{d}, -2, v{d}')
        return r
    seq = [(kc,Q,tp+i) for Q in range(2) for tp in (0,2) for kc in range(2) for i in range(2)]
    fill = {6: fin(0,0)[:2], 7: fin(0,0)[2:], 8: fin(0,1)[:2], 9: fin(0,1)[2:], 10: fin(0,2)[:2], 11: fin(0,2)[2:]+fin(0,3)[:1],
            12: fin(0,3)[1:], 13: ['ST0'], 14: fin(1,0)[:2], 15: fin(1,0)[2:]+fin(1,1)}
    a.wl('o0')
    for i, o in enumerate(seq):
        if i == 2: a.wl('o1')
        if i == 12: a.wl('st')
        omf(*o)
        if i == 1: stage(a, 'oB')
        for x in fill.get(i, []):
            if x == 'ST0': a.vm(f'buffer_store_dwordx4 {vr(vAq,4)}, v{vPW}, {W}, 0 offen {st}', 'P')
            else: a(x)
    for x in fin(1,2) + fin(1,3): a(x)
    a.vm(f'buffer_store_dwordx4 {vr(vAq+4,4)}, v{vPW}, {W}, s{sP1} offen {st}', 'P')
    stage(a, ('q',0)); stage(a, ('q',1))
    a(f's_add_u32 s{sN}, s{sN}, 1\ns_mov_b32 s{sCnt}, 0\ns_add_u32 s{sOKM}, s{sOKM}, 262144')
    for r in list(range(vAk, 128, 2)) + list(range(vAq, vAk, 2)): a('v_mov_b64 v[%d:%d], 0' % (r, r+1))
    if cfg.get('post_hook'): cfg['post_hook'](a, par, L)
    stamp(a, cfg, 4)
    if 7 in cfg.get('stamps', ()): a('s_waitcnt vmcnt(0)')
    stamp(a, cfg, 7)
    for i in range(cfg.get('d1', 0)): a('s_sleep 1')
    if 'w1' in OPT: a('s_waitcnt vmcnt(0)')
    if 'w1h' in OPT: a('s_waitcnt vmcnt(1)')
    G, R, D = vM, vM+8, vM
    a(f'''
    {L}P1:
    buffer_load_dwordx4 {vr(R,4)}, v{vPR}, {W}, 0 offen sc1
    buffer_load_dwordx4 {vr(R+4,4)}, v{vPR}, {W}, 0 offen offset:1024 sc1
    s_add_u32 s{sCnt}, s{sCnt}, 1
    s_cmp_gt_u32 s{sCnt}, {POLLMAX}
    s_cbranch_scc1 KEND
    s_waitcnt vmcnt(1)
    v_mfma_f32_16x16x32_bf16 {vr(D,4)}, {vr(R,4)}, {vr(vDel,4)}, 0
    s_waitcnt vmcnt(0)
    v_mfma_f32_16x16x32_bf16 {vr(D,4)}, {vr(R+4,4)}, {vr(vDel,4)}, {vr(D,4)}
    v_bitop3_b32 v{vqT}, v{R}, v{R+4}, 1 bitop3:{'0x80' if ph else '0xa8'}
    {'v_cmpx_ne_u32' if 'mask' in OPT else 'v_cmp_ne_u32'} vcc, {ph}, v{vqT}
    s_cbranch_vccnz {L}P1
    {'s_mov_b64 exec, -1' if 'mask' in OPT else ''}
    v_add_f32 v{D}, v{D}, v{D+1}
    v_add_f32 v{D+2}, v{D+2}, v{D+3}
    v_add_f32 v{D}, v{D}, v{D+2}
    v_mov_b32_dpp v{D+1}, v{D} quad_perm:[2,3,2,3] {dp}
    v_cvt_pk_bf16_f32 v{D}, v{D}, v{D+1}
    {f'v_or_b32 v{D}, 1, v{D}' if ph else f'v_and_b32 v{D}, -2, v{D}'}
    buffer_store_dword v{D}, v{vMW}, {W}, 0 offen {st}
    v_readlane_b32 s{sRdy}, v{vT}, 0
    v_readlane_b32 s{sFlK}, v{vT}, 1
    s_min_u32 s{sRdy}, s{sRdy}, s{sFlK}
    s_sub_u32 s{sRdy}, s{sRdy}, 2
    v_mov_b32 v{vT}, s{sN}
    ''')
    for j in range(1, 4): a(f'v_xor_b32 v{vqT+j}, {j << 11}, v{vX}')
    a.wl()
    if cfg.get('time'): a(f's_add_u32 s72, s72, s{sCnt}')
    a(f's_mov_b32 s{sCnt}, 0')
    stamp(a, cfg, 5)
    for i in range(cfg.get('d2', 0)): a('s_sleep 1')
    if 'w2' in OPT: a('s_waitcnt vmcnt(0)')
    t3 = '0x80' if ph else '0xfe'
    a(f'''
    {L}P2:
    buffer_load_dwordx4 {vr(G,4)}, v{vX}, {W}, s{sOM} offen sc1
    buffer_load_dwordx4 {vr(G+4,4)}, v{vX}, {W}, s{sOM} offen offset:1024 sc1
    s_add_u32 s{sCnt}, s{sCnt}, 1
    s_cmp_gt_u32 s{sCnt}, {POLLMAX}
    s_cbranch_scc1 KEND
    s_waitcnt vmcnt(1)
    v_bitop3_b32 v{vqT}, v{G}, v{G+1}, v{G+2} bitop3:{t3}
    s_waitcnt vmcnt(0)
    v_bitop3_b32 v{vqT}, v{vqT}, v{G+3}, v{G+4} bitop3:{t3}
    v_bitop3_b32 v{vqT}, v{vqT}, v{G+5}, v{G+6} bitop3:{t3}
    v_bitop3_b32 v{vqT}, v{vqT}, v{G+7}, 1 bitop3:{'0x80' if ph else '0xa8'}
    {'v_cmpx_ne_u32' if 'mask' in OPT else 'v_cmp_ne_u32'} vcc, {ph}, v{vqT}
    s_cbranch_vccnz {L}P2
    {'s_mov_b64 exec, -1' if 'mask' in OPT else ''}
    ''')
    if cfg.get('time'): a(f's_add_u32 s73, s73, s{sCnt}')
    stamp(a, cfg, 6)
    a.vq = []

def loop(a, st, cfg, L):
    a(f'{L}LOOP:')
    step(a, 0, st, cfg, L+'A')
    step(a, 1, st, cfg, L+'B')
    a(f's_branch {L}LOOP')
    a(f'{L}BTAIL:')
    a(f'''
    s_add_u32 s{sOKM}, s{sOKM}, 262144
    buffer_store_dwordx4 {vr(vkT,4)}, v{vX}, s[4:7], s{sOKM} offen sc1
    buffer_store_dwordx2 {vr(vvm,2)}, v{vX}, s[4:7], s{sOKM} offen offset:1024 sc1
    s_waitcnt vmcnt(0)
    v_mov_b32 v{vT}, 0xff
    buffer_store_dword v{vT}, v{vFl}, s[4:7], 0 offen sc1
    s_branch CH_END
    ''')
    for x in 'AB':
        a(f'{L}{x}RS:')
        rdy(a, f'{L}{x}RL')
        a(f's_branch {L}{x}RB')
        m, t, sm = vAq+4, vAq+5, vAk+4
        a(f'''
        {L}{x}MX:
        v_max_f32 v{m}, 0, v{sm}
        v_max_f32_dpp v{m}, v{m}, v{m} quad_perm:[1,0,3,2] row_mask:0xf bank_mask:0xf
        v_mov_b32 v{t}, v{m}
        v_permlane16_swap_b32 v{m}, v{t}
        v_max_f32 v{m}, v{m}, v{t}
        v_mov_b32 v{t}, v{m}
        v_permlane32_swap_b32 v{m}, v{t}
        v_max_f32 v{m}, v{m}, v{t}
        v_sub_f32 v{sm}, v{sm}, v{m}
        v_exp_f32 v{m}, -v{m}
        s_nop 7
        v_mul_f32 v{vAk}, v{vAk}, v{m}
        v_mul_f32 v{vAq}, v{vAq}, v{m}
        v_mul_f32 v{vAq+1}, v{vAq+1}, v{m}
        v_mul_f32 v{vAq+2}, v{vAq+2}, v{m}
        v_mul_f32 v{vAq+3}, v{vAq+3}, v{m}
        s_nop 1
        s_branch {L}{x}MB
        ''')

def chain(a, cfg):
    ABL.clear(); ABL.update(cfg.get('abl', ())); OPT.clear(); OPT.update(cfg.get('opt', ('mask','w1','w2')))
    prologue(a, cfg)
    if cfg.get('time'):
        a(f's_memtime s[{sT0}:{sT0+1}]\ns_waitcnt lgkmcnt(0)\ns_mov_b32 s81, s{sT0}')
        for k in range(10): a('s_mov_b32 s%d, 0' % (64+k))
    a(f's_cmp_eq_u32 s{S_PURE}, 0\ns_cbranch_scc1 CHS_LOOP')
    loop(a, '', cfg, 'CHP_')
    loop(a, 'sc1', cfg, 'CHS_')
    a('CH_END:')
```

```python
from common import *
vX, vLr, vSmW, vOW, vL1, vL2, vPW, vPR, vMW, vIdx, vmE, vmO = range(12)
vSel0, vSel1, vDel = 12, 14, 16
vqT, vkT, vvm, vFl, vT = 20, 24, 28, 30, 31
vM, vSt, vK, vV = 32, 64, 80, 88
vAq, vAk, vAv = 104, 112, 120
sWq, sWk, sWv, sWo = 20, 24, 28, 32
sN, sCnt, sOK, sOV, sOKM, sOM, sP1, sC, sOdd, sTmp = 36, 37, 38, 39, 40, 41, 42, 43, 44, 46
sT0 = 48
sRdy, sFlK, sFlP = 56, 57, 58
L_M, L_SX, L_SM, L_O, L_K = 0, 8192, 16384, 17408, 20480
def slot(i): return ((i + 2) % 10) * 16384
O_LDS = [(0,0,0),(0,0,1),(0,1,2),(0,1,3)]
opreg = {}
LP = [('q',0),('q',1),('q',5),('k',4),('v',2),('v',7)]
def _alloc():
    lst = []
    for m in 'qkv':
        for kc in range(8):
            if (m,kc) in LP: continue
            for T in range(2): lst.append((m,kc,T))
    for kc in range(2):
        for Q in range(2):
            for t in range(4):
                if (kc,Q,t) not in O_LDS: lst.append(('o',kc,Q,t))
    for i,k in enumerate(lst): opreg[k] = ('a', 8*i) if i < 32 else ('v', 128 + 8*(i-32))
_alloc()
chunks = [('o',kc,u,nu) for kc in range(2) for u in range(2) for nu in range(2)]
for m in 'qkv':
    for j in (0,1,4,5):
        if (m,j) not in LP and (m,j^2) not in LP: chunks += [(m,j),(m,j^2)]
for m,j in LP: chunks += [(m,j),(m,j^2)]
assert len(set(chunks)) == 32
def pair_addr(key):
    if key == 'oA': a = 2*16384
    elif key == 'oB': a = 3*16384
    else: a = (4 + LP.index(key))*16384
    return (vX, a) if a < 65536 else ((vL1, a-65536) if a < 131072 else (vL2, a-131072))

ABL = set(); OPT = set(); HOOK = {}
STP = 'v00,v01,v10,v11 q51,q60,q61,q70 k41,k50,k51,k60 v21,v40,v41,v50 y0,z0,y1,z1 o1,o2,o3,o4'
VMP = 'fs:k00 pk:q20 v0:q40 v1:q60 pv:k20 k0:v20 k1:v60 fl:z3'
def stage(a, key):
    if 'nostage' in ABL: return
    b, o = pair_addr(key)
    for T in range(2):
        for h in range(2):
            a.ds('ds_read_b128 %s, v%d offset:%d' % (vr((vM+16 if key == ('q',0) else vSt)+8*T+4*h,4), b, o + T*8192 + h*1024), 'st')

def prologue(a, cfg):
    a('''
    CH:
    s_load_dwordx4 s[20:23], s[0:1], 16
    s_load_dwordx4 s[28:31], s[0:1], 32
    s_load_dwordx2 s[12:13], s[0:1], 8
    v_and_b32 v40, 63, v0          ; lane
    v_and_b32 v41, 15, v0          ; c
    v_bfe_u32 v42, v0, 4, 2        ; g
    ''')
    a(f'''
    v_lshrrev_b32 v45, 2, v41
    v_lshlrev_b32 v43, 13, v45
    v_lshl_add_u32 v43, v42, 11, v43
    v_and_b32 v44, 3, v40
    v_lshl_add_u32 v43, v44, 4, v43
    s_lshl_b32 s36, s{S_WAVE}, 16
    s_lshl_b32 s37, s{S_RANK}, 6
    v_lshl_add_u32 v44, v42, 2, v45
    v_lshlrev_b32 v44, {7 if 'swz' in OPT else 31}, v44
    v_and_b32 v44, 0x780, v44
    v_xor_b32 v44, s37, v44
    v_add_u32 v43, v43, v44
    s_add_u32 s36, s36, {WS_P}
    v_add_u32 v{vPW}, s36, v43
    v_and_b32 v43, 1, v41
    v_lshlrev_b32 v43, 5, v43
    v_lshl_add_u32 v43, v45, 4, v43
    v_lshl_add_u32 v43, v42, 2, v43
    s_lshl_b32 s36, s{S_RANK}, 8
    s_lshl_b32 s37, s{S_WAVE}, 6
    s_add_u32 s36, s36, s37
    s_add_u32 s36, s36, {WS_M}
    v_add_u32 v43, s36, v43
    v_and_b32 v44, 10, v41
    v_cmp_eq_u32 vcc, 0, v44
    v_mov_b32 v44, {OOB}
    v_cndmask_b32 v{vMW}, v44, v43, vcc
    s_lshl_b32 s36, s{S_RANK}, 7
    s_lshl_b32 s37, s{S_WAVE}, 2
    s_add_u32 s36, s36, s37
    s_add_u32 s36, s36, {WS_FL}
    v_lshlrev_b32 v43, 12, v40
    v_sub_u32 v43, s36, v43          ; lane 1 points one page lower (spare page; K progress word when reading)
    v_cmp_gt_u32 vcc, 2, v40
    v_cndmask_b32 v{vFl}, v44, v43, vcc
    v_mov_b32 v112, 0
    v_mov_b32 v113, 0
    v_mov_b32 v114, 0
    v_mov_b32 v115, 0
    s_mov_b32 s{sP1}, 32768
    ''')
    a.vm('buffer_store_dwordx4 v[112:115], v%d, s[%d:%d], 0 offen sc1' % (vPW, S_WS, S_WS+3), 'z')
    a.vm('buffer_store_dwordx4 v[112:115], v%d, s[%d:%d], s%d offen sc1' % (vPW, S_WS, S_WS+3, sP1), 'z')
    a.vm('buffer_store_dword v112, v%d, s[%d:%d], 0 offen sc1' % (vMW, S_WS, S_WS+3), 'z')
    a.vm('buffer_store_dword v112, v%d, s[%d:%d], 0 offen sc1' % (vFl, S_WS, S_WS+3), 'z')
    a('''
    s_waitcnt lgkmcnt(0)
    s_mov_b32 s24, s22
    s_mov_b32 s25, s23
    s_mov_b32 s32, s30
    s_mov_b32 s33, s31
    ''')
    for s in (sWq, sWk, sWv, sWo): a('s_mov_b32 s%d, 0x400000\ns_mov_b32 s%d, 0x00020000' % (s+2, s+3))
    a('s_mov_b32 s14, 8192\ns_mov_b32 s15, 0x00020000')
    a(f'''
    s_lshl_b32 s36, s{S_WAVE}, 1
    v_lshrrev_b32 v43, 5, v40
    v_add_u32 v43, s36, v43         ; key = 2w + (l>>5)
    v_lshrrev_b32 v44, 1, v41
    v_xor_b32 v43, v43, v44
    v_and_b32 v44, 4, v43
    v_lshlrev_b32 v43, 5, v43
    v_lshl_add_u32 v43, v44, 19, v43
    v_and_b32 v44, 1, v40
    v_lshl_add_u32 v43, v44, 4, v43
    v_lshl_add_u32 v43, v42, 13, v43
    s_lshl_b32 s36, s{S_WAVE}, 15
    s_lshl_b32 s37, s{S_RANK}, 8
    s_add_u32 s36, s36, s37
    v_add_u32 v124, s36, v43
    v_xor_b32 v125, 0x100000, v124
    v_xor_b32 v126, 0x200000, v124
    v_xor_b32 v127, 0x300000, v124
    s_and_b32 s36, s{S_WAVE}, 1
    s_lshl_b32 s36, s36, 15
    s_lshr_b32 s37, s{S_WAVE}, 1
    s_lshl_b32 s37, s37, 12
    s_add_u32 s36, s36, s37
    s_lshl_b32 s37, s{S_RANK}, 17
    s_add_u32 s36, s36, s37
    v_lshlrev_b32 v43, 4, v40
    v_add_u32 v97, s36, v43
    v_xor_b32 v98, 16, v97
    v_xor_b32 v99, 0x80, v97
    v_add_u32 v99, {16384-2048}, v99
    v_xor_b32 v100, 16, v99
    s_lshl_b32 s38, s{S_WAVE}, 10     ; w*1024
    s_lshl_b32 s39, s{S_WAVE}, 12     ; w*4096
    ''')
    NT = 'nt' if 'nt' in OPT else ''
    def dma(i):
        ch = chunks[i]
        if ch[0] == 'o':
            _, kc, u, nu = ch
            a('s_add_u32 m0, s39, %d' % slot(i))
            a('s_mov_b32 s40, %d' % ((64*kc + 8*u + 2*nu)*1024))
            for r in range(4):
                a.vm('buffer_load_dwordx4 v%d, s[%d:%d], s40 offen offset:%d %s lds' % (97+r, sWo, sWo+3, r*1024, NT), i)
        else:
            s = {'q':sWq,'k':sWk,'v':sWv}[ch[0]]
            for m in range(4):
                a('s_add_u32 m0, s38, %d' % (slot(i) + m*4096))
                a('s_mov_b32 s40, %d' % ((ch[1]&1)*524288 + m*131072))
                a.vm('buffer_load_dwordx4 v%d, s[%d:%d], s40 offen %s lds' % (124 + (ch[1]>>1), s, s+3, NT), i)
    for i in range(9): dma(i)
    a(f'''
    v_lshlrev_b32 v{vLr}, 4, v40
    s_lshl_b32 s36, s{S_WAVE}, 11
    v_add_u32 v{vX}, s36, v{vLr}
    v_add_u32 v{vL1}, 0x10000, v{vX}
    v_add_u32 v{vL2}, 0x20000, v{vX}
    s_lshl_b32 s36, s{S_WAVE}, 2
    v_add_u32 v{vSmW}, s36, v{vLr}
    s_lshr_b32 s36, s{S_WAVE}, 1
    s_lshl_b32 s36, s36, 10
    s_and_b32 s37, s{S_WAVE}, 1
    s_lshl_b32 s37, s37, 3
    s_add_u32 s36, s36, s37
    v_add_u32 v{vOW}, s36, v{vLr}
    v_and_b32 v44, 3, v40
    ; P read: j*8192 + w*2048 + ((l&3)+4g)*64 + ((l>>2)&3)*16
    v_lshl_add_u32 v43, v42, 2, v44
    v_lshlrev_b32 v43, 6, v43
    v_lshrrev_b32 v45, 2, v41
    v_lshl_add_u32 v43, v45, 4, v43
    s_lshl_b32 s36, s{S_RANK}, 13
    s_lshl_b32 s37, s{S_WAVE}, 11
    s_add_u32 s36, s36, s37
    s_add_u32 s36, s36, {WS_P}
    v_add_u32 v{vPR}, s36, v43
    ; masks
    v_and_b32 v43, 1, v41
    v_sub_u32 v{vmO}, 0, v43
    v_not_b32 v{vmE}, v{vmO}
    v_and_b32 v{vIdx}, 0xaaaa, v{vmO}
    v_add_u32 v{vIdx}, 0x4444, v{vIdx}
    s_mov_b32 s{sOdd}, 0xaaaaaaaa
    s_mov_b32 s{sOdd+1}, 0xaaaaaaaa
    v_lshrrev_b32 v43, 2, v41
    v_cmp_eq_u32 vcc, v43, v42
    v_bfe_u32 v43, v41, 1, 1
    v_lshlrev_b32 v43, 4, v43
    v_mov_b32 v44, 0x3f80
    v_lshlrev_b32 v43, v43, v44
    v_cndmask_b32 v{vSel0}, 0, v43, vcc
    v_mov_b32 v{vSel0+1}, 0
    v_mov_b32 v{vSel1}, 0
    v_mov_b32 v{vSel1+1}, v{vSel0}
    v_and_b32 v43, 1, v41
    v_lshlrev_b32 v43, 4, v43
    v_lshlrev_b32 v43, v43, v44
    v_bfe_u32 v45, v41, 1, 2
    ''')
    for i in range(4):
        a('v_cmp_eq_u32 vcc, %d, v45\nv_cndmask_b32 v%d, 0, v43, vcc' % (i, vDel+i))
    a(f'''
    v_lshrrev_b32 v43, 2, v41        ; r
    v_and_b32 v44, 3, v41            ; cc
    v_and_b32 v45, 1, v42            ; g&1
    v_lshrrev_b32 v46, 1, v42        ; g>>1
    v_lshl_add_u32 v47, v43, 1, v45  ; key = 4(r>>1)+2(r&1)+(g&1) = 2r + (g&1)
    v_lshlrev_b32 v48, 9, v47
    v_lshl_add_u32 v48, v46, 12, v48
    s_lshl_b32 s36, s{S_WAVE}, 1
    v_xor_b32 v47, s36, v47
    v_lshl_add_u32 v48, v47, 5, v48
    v_lshl_add_u32 v101, v44, 3, v48
    s_and_b32 s36, s{S_WAVE}, 1
    s_lshl_b32 s36, s36, 14
    v_add_u32 v101, s36, v101
    v_xor_b32 v102, 32, v101
    v_xor_b32 v96, 0x4000, v101
    v_xor_b32 v97, 0x4000, v102
    v_lshl_add_u32 v47, v42, 2, v43  ; row = 4g + r
    v_lshlrev_b32 v47, 10, v47
    v_lshl_add_u32 v47, v44, 5, v47
    s_lshl_b32 s36, s{S_WAVE}, 8
    v_add_u32 v47, s36, v47
    v_and_b32 v48, 1, v43
    v_lshl_add_u32 v47, v48, 4, v47
    v_lshrrev_b32 v48, 1, v43
    v_lshl_add_u32 v104, v48, 7, v47
    v_xor_b32 v105, 16, v104
    v_xor_b32 v106, 0x80, v104
    v_xor_b32 v107, 0x90, v104
    ''')
    a(f'''
    v_lshrrev_b32 v43, 1, v41
    v_lshlrev_b32 v43, 10, v43
    v_lshl_add_u32 v43, v42, 5, v43
    v_and_b32 v44, 1, v41
    v_lshl_add_u32 v43, v44, 4, v43
    s_lshl_b32 s36, s{S_WAVE}, 8
    v_add_u32 v103, s36, v43
    ''')
    def rd_base(i, regs):
        s = slot(i)
        hi = s // 65536 * 65536
        if hi == 0: return regs, s
        t = [108 + k for k in range(len(regs))]
        for x, y in zip(t, regs): a('v_add_u32 v%d, %d, v%d' % (x, hi, y))
        return t, s - hi
    def writeback(i):
        b, o = pair_addr(LP[i]); base = 64 + 16*(i & 1)
        for T in range(2):
            for h in range(2):
                a.ds('ds_write_b128 v%d, %s offset:%d' % (b, vr(base+8*T+4*h,4), o + T*8192 + h*1024))
    a.wv('z'); a('s_barrier')
    arrive(a, 112, 113, 'CH_AR', chain=True)
    for i in range(32):
        if i < 8:
            a.wv(i); a.wl(); a('s_barrier')
            dma(i+9)
        elif i % 2 == 0:
            a.wv(i+1); a.wl(); a('s_barrier')
            if 8 < i < 24: dma(i+8)
            if i < 24: dma(i+9)
            if i == 24: writeback(0)
            if i >= 24: writeback((i-22)//2)
            regs4, o4 = rd_base(i, [101,102,96,97])
        ch = chunks[i]
        if ch[0] == 'o':
            _, kc, u, nu = ch
            regs, o = rd_base(i, [104,105,106,107])
            for Q in range(2):
                for t in range(4):
                    if (kc,Q,t) in O_LDS: p, b = 'v', 32 + 8*O_LDS.index((kc,Q,t))
                    else: p, b = opreg[('o',kc,Q,t)]
                    a.ds('ds_read_b64_tr_b16 %s, v%d offset:%d' % (vr(b+4*u+2*nu,2,p), regs[2*Q+(t>>1)], o + 8*(t&1)))
        else:
            regs, o = regs4[2*(i&1):], o4
            for T in range(2):
                if ch in LP: p, b = 'v', 64 + 16*(LP.index(ch) & 1) + 8*T
                else: p, b = opreg[(ch[0],ch[1],T)]
                for u in range(2):
                    for nu in range(2):
                        a.ds('ds_read_b64_tr_b16 %s, v%d offset:%d' % (vr(b+4*u+2*nu,2,p), regs[T], o + (32*u+nu)*256))
        if i == 23:
            a.vm('buffer_load_dwordx4 v[116:119], v103, s[12:15], 0 offen', 'm0')
            a.vm('buffer_load_dwordx4 v[120:123], v103, s[12:15], 0 offen offset:128', 'm0')
    a.wl(); a('s_barrier')
    writeback(5)
    for k in range(4):
        for h in range(2):
            a.ds('ds_write_b128 v%d, %s offset:%d' % (vX, vr(32+8*k+4*h,4), 32768 + (k>>1)*16384 + (k&1)*8192 + h*1024))
    a.wv(); a.wl()
    a('s_mov_b32 s36, 0x05040100\ns_mov_b32 s37, 0x07060302')
    for k in range(2):
        s = 116 + 4*k; d = vM + 4*k
        a(f'''
        v_perm_b32 v{d}, v{s+2}, v{s}, s36
        v_perm_b32 v{d+1}, v{s+2}, v{s}, s37
        v_perm_b32 v{d+2}, v{s+3}, v{s+1}, s36
        v_perm_b32 v{d+3}, v{s+3}, v{s+1}, s37
        ''')
    stage(a, ('q',0)); stage(a, ('q',1))
    a(f'''
    s_lshl_b32 s36, s{S_RANK}, 13
    s_add_u32 s{sOK}, s36, {WS_KC}
    s_add_u32 s{sOV}, s36, {WS_VC}
    s_add_u32 s{sOKM}, s36, {WS_KM - 262144}
    s_mov_b32 s{sOM}, {WS_M}
    s_cmp_eq_u32 s{S_WAVE}, 0
    s_cselect_b32 s46, 1, 0
    s_mov_b32 s47, 0
    s_lshl_b32 m0, s{S_WAVE}, 11
    s_add_u32 m0, m0, {L_K}
    s_mov_b32 s{sC}, {f32(128**-0.5*LOG2E)}
    s_mov_b32 s{sN}, 0
    ''')
    for r in range(vAq, 128, 2): a('v_mov_b64 v[%d:%d], 0' % (r, r+1))
    a.wl()
    tabs(a, cfg, 12)
    dbgpoll(a, vqT, vqT+1, 'CH_BP')
    a(f'''
    s_cmp_eq_u32 s98, 0
    s_cbranch_scc1 FALLBACK
    s_movk_i32 s{sFlP}, 0x2000
    s_mov_b32 s{sN}, -1
    ''')
    rdy(a, 'CH_R0')
    tabs(a, cfg, 13)
    a(f's_mov_b32 s{sN}, 0')
    a.vm(f'buffer_load_dwordx4 {vr(vK,4)}, v{vX}, s[4:7], s{sOK} offen sc1')
    a.vm(f'buffer_load_dwordx4 {vr(vK+4,4)}, v{vX}, s[4:7], s{sOK} offen offset:1024 sc1')
    a.vm(f'buffer_load_dwordx4 {vr(vV,4)}, v{vX}, s[4:7], s{sOV} offen sc1')
    a.vm(f'buffer_load_dwordx4 {vr(vV+4,4)}, v{vX}, s[4:7], s{sOV} offen offset:1024 sc1')
    a(f's_add_u32 s{sOV}, s{sOV}, 262144\ns_add_u32 s{sOK}, s{sOK}, 262144\nv_mov_b32 v{vT}, 0')
    for j in range(1, 4): a(f'v_xor_b32 v{vqT+j}, {j << 11}, v{vX}')
    a.wv(); a.wl()

def rdy(a, L):
    a(f'''
    s_mov_b32 s{sCnt}, 0
    {L}:
    buffer_load_dword v{vqT}, v{vFl}, s[4:7], s{sFlP} offen sc1
    s_add_u32 s{sCnt}, s{sCnt}, 1
    s_cmp_gt_u32 s{sCnt}, {POLLMAX}
    s_cbranch_scc1 KEND
    s_waitcnt vmcnt(0)
    v_readlane_b32 s{sRdy}, v{vqT}, 0
    v_readlane_b32 s{sFlK}, v{vqT}, 1
    s_min_u32 s{sRdy}, s{sRdy}, s{sFlK}
    s_sub_u32 s{sRdy}, s{sRdy}, 2
    s_cmp_lt_i32 s{sRdy}, s{sN}
    s_cbranch_scc1 {L}
    ''')

def stamp(a, cfg, k):
    if k not in cfg.get('stamps', ()): return
    a.wl(); a('s_memtime s[62:63]\ns_waitcnt lgkmcnt(0)\ns_sub_u32 s80, s62, s81\ns_mov_b32 s81, s62\ns_add_u32 s%d, s%d, s80' % (64+k, 64+k))

def smf(a, m, kc, T):
    if 'no'+m in ABL: return
    acc = {'q':vAq,'k':vAk,'v':vAv}[m] + 4*T
    if (m,kc) in LP: p, b = 'v', (vM+16 if (m,kc) == ('q',0) else vSt) + 8*T
    else: p, b = opreg[(m,kc,T)]
    a('v_smfmac_f32_16x16x64_bf16 %s, %s, %s, v%d' % (vr(acc,4), vr(vM+4*kc,4), vr(b,8,p), vIdx))
    hook(a, '%s%d%d' % (m,kc,T))

def hook(a, w):
    for x in HOOK.pop(w, []):
        if x.startswith('buffer_store_dword v'): a('s_mov_b64 exec, s[46:47]'); a.vm(x); a('s_mov_b64 exec, -1')
        elif x[0] == 's': a(x)
        elif x[0] == 'd': a.ds(x, 'st')
        else: a.vm(x)

def step(a, par, st, cfg, L):
    ph = par ^ 1
    V = vV + 8*par; Vn = vV + 8*(par^1)
    W = 's[4:7]'
    a.dq = []; a.vq = []
    if cfg.get('trace'): a('s_memtime s[62:63]')
    a.ds(f'ds_write_b128 v{vX}, {vr(vM,4)} offset:{L_M}')
    a.ds(f'ds_write_b128 v{vX}, {vr(vM+4,4)} offset:{L_M+1024}')
    def s2(m, j): smf(a,m,j,0); smf(a,m,j,1)
    def vm(x, tag, ab):
        if 'novm' not in ABL and ab not in ABL: a.vm(x, tag)
    VM = dict(pk=f'buffer_store_dwordx4 {vr(vkT,4)}, v{vX}, {W}, s{sOKM} offen sc1',
              pv=f'buffer_store_dwordx4 {vr(vvm,4)}, v{vX}, {W}, s{sOKM} offen offset:1024 sc1',
              fs=f'buffer_store_dword v{vT}, v{vFl}, {W}, 0 offen sc1',
              fl=f'buffer_load_dword v{vT}, v{vFl}, {W}, s{sFlP} offen sc1',
              v0=f'buffer_load_dwordx4 {vr(Vn,4)}, v{vX}, {W}, s{sOV} offen sc1',
              v1=f'buffer_load_dwordx4 {vr(Vn+4,4)}, v{vX}, {W}, s{sOV} offen offset:1024 sc1',
              k0=f'buffer_load_dwordx4 {vr(vK,4)}, v{vX}, {W}, s{sOK} offen sc1',
              k1=f'buffer_load_dwordx4 {vr(vK+4,4)}, v{vX}, {W}, s{sOK} offen offset:1024 sc1')
    if 'kd' in OPT:
        for h in range(2): VM['k%d'%h] = f'buffer_load_dwordx4 v{vX}, {W}, s{sOK} offen offset:{h*1024} sc1 lds'
    HOOK.clear()
    for x in cfg.get('vmp', VMP).split():
        k, w = x.split(':'); HOOK.setdefault(w, []).append('s_nop '+k[1:] if k[0] == 'n' else VM.pop(k))
    assert not VM
    for key, pos in zip([('q',5),('k',4),('v',2),('v',7),'oA','oB'], cfg.get('stp', STP).split()):
        b, o = pair_addr(key)
        for i, w in enumerate(pos.split(',')):
            HOOK.setdefault(w, []).insert(0, 'ds_read_b128 %s, v%d offset:%d' % (vr(vSt+4*i,4), b, o + (i>>1)*8192 + (i&1)*1024))
    s2('q',0); s2('q',1)
    a.wl(); a('s_barrier')
    stamp(a, cfg, 0)
    for j in range(2,8): a.ds(f'ds_read_b128 {vr(vM+4*j,4)}, v{vqT+(j>>1)} offset:{L_M+(j&1)*1024}', 'M%d'%j)
    smf(a,'k',0,0)
    smf(a,'k',0,1)
    a(f's_cmp_lt_i32 s{sRdy}, s{sN}\ns_cbranch_scc1 {L}RS\n{L}RB:')
    s2('k',1); s2('v',0); s2('v',1)
    if cfg.get('trace'):
        a(f's_lshl_b32 s63, s{sN}, 12\ns_add_u32 s63, s63, {WS_TM + 65536 - WS_FL}\nv_mov_b32 v{vqT}, s62')
        a('s_mov_b64 exec, 1'); a.vm(f'buffer_store_dword v{vqT}, v{vFl}, {W}, s63 offen'); a('s_mov_b64 exec, -1')
    for j in range(2,8):
        a.wl('st' if j == 5 else 'M%d'%j)
        smf(a,'q',j,0)
        smf(a,'q',j,1)
    stamp(a, cfg, 1)
    pk = vkT
    dp = 'row_mask:0xf bank_mask:0xf'
    def sums(acc, dst):
        return [f'v_add_f32 v{acc}, v{acc}, v{acc+1}', f'v_add_f32 v{acc+2}, v{acc+2}, v{acc+3}',
                f'v_add_f32 v{acc+4}, v{acc+4}, v{acc+5}', f'v_add_f32 v{acc+6}, v{acc+6}, v{acc+7}',
                f'v_cvt_pk_bf16_f32 v{dst}, v{acc}, v{acc+2}', f'v_cvt_pk_bf16_f32 v{dst+1}, v{acc+4}, v{acc+6}']
    def transp(acc, T):
        a(f'v_mfma_f32_16x16x16_bf16 {vr(acc+4*T,4)}, {vr(pk,2)}, {vr(vSel0+2*T,2)}, 0')
    def cvt4(acc, dst):
        return [f'v_cvt_pk_bf16_f32 v{dst+i}, v{acc+2*i}, v{acc+2*i+1}' for i in range(4)]
    s = sums(vAq, pk); c = cvt4(vAq, vqT)
    s2('k',2)
    a(s[0]); a(s[1]); smf(a,'k',3,0); a(s[2]); a(s[3]); a(s[4]); a(s[5]); smf(a,'k',3,1)
    a.wl('st'); transp(vAq,0); transp(vAq,1)
    s2('k',4)
    a(c[0]); a(c[1]); smf(a,'k',5,0); a(c[2]); a(c[3]); smf(a,'k',5,1)
    a(f'v_mfma_f32_16x16x32_bf16 {vr(vAq,4)}, {vr(vK,4)}, {vr(vqT,4)}, 0')
    a(f'v_mfma_f32_16x16x32_bf16 {vr(vAq+4,4)}, {vr(vK+4,4)}, {vr(vqT,4)}, 0')
    smf(a,'k',6,0)
    smf(a,'k',6,1)
    smf(a,'k',7,0)
    for r in range(4): a(f'v_cndmask_b32 v{vAq+r}, v{vAq+r}, v{vAq+4+r}, s[{sOdd}:{sOdd+1}]')
    smf(a,'k',7,1)
    a.ds(f'ds_write_b128 v{vX}, {vr(vAq,4)} offset:{L_SX}', 'sx')
    s = sums(vAk, pk); c = cvt4(vAk, vkT)
    s2('v',3)
    for x in s: a(x)
    a.wl(); a('s_barrier')
    SX = [vAq, vAq+4, vM, vM+4]
    if 'dp2' in OPT: a('s_waitcnt vmcnt(8)')
    for w in range(4): a.ds(f'ds_read_b128 {vr(SX[w],4)}, v{vLr} offset:{L_SX+w*2048}', 'x%d'%w)
    transp(vAk,0); transp(vAk,1)
    s2('v',2)
    for x in c: a(x)
    smf(a,'v',4,0)
    a(f'v_mfma_f32_16x16x32_bf16 {vr(vAk,4)}, {vr(vkT,4)}, {vr(vqT,4)}, 0')
    smf(a,'v',4,1)
    a.wl('x1')
    for r in range(4): a(f'v_add_f32 v{vAq+r}, v{vAq+r}, v{vAq+4+r}')
    a(f'v_cndmask_b32 v{vAk}, v{vAk}, v{vAk+2}, s[{sOdd}:{sOdd+1}]')
    a.ds(f'ds_write_b32 v{vSmW}, v{vAk} offset:{L_SM}', 'sm')
    smf(a,'v',5,0)
    a.wl('x3')
    for r in range(4): a(f'v_add_f32 v{vM+r}, v{vM+r}, v{vM+4+r}')
    smf(a,'v',5,1)
    for r in range(4): a(f'v_add_f32 v{vAq+r}, v{vAq+r}, v{vM+r}')
    m, t, sm = vAq+4, vAq+5, vAk+4
    P0, B0, B1, One, Bm, Do, Dl = vAq+6, vM, vM+4, vqT, vqT+2, vAq, vAk
    a.wl(); a('s_barrier')
    a.ds(f'ds_read_b128 {vr(sm,4)}, v{vLr} offset:{L_SM}', 'sm')
    a(f'v_max3_f32 v{m}, v{vAq}, v{vAq+1}, v{vAq+2}\nv_max_f32 v{m}, v{m}, v{vAq+3}')
    smf(a,'v',6,0)
    a(f'v_mov_b32 v{One}, 0x3f803f80')
    a(f'v_max_f32_dpp v{m}, v{m}, v{m} quad_perm:[1,0,3,2] {dp}')
    a(f'v_mov_b32 v{t}, v{m}')
    smf(a,'v',6,1)
    a(f'v_mov_b32 v{One+1}, 0x3f803f80')
    a(f'v_permlane16_swap_b32 v{m}, v{t}\nv_max_f32 v{m}, v{m}, v{t}\nv_mov_b32 v{t}, v{m}')
    s2('v',7)
    a(f'v_permlane32_swap_b32 v{m}, v{t}\nv_max_f32 v{m}, v{m}, v{t}')
    a(f'v_mul_f32 v{m}, s{sC}, v{m}')
    hook(a, 'y0')
    stamp(a, cfg, 2)
    zero = lambda r: a(f'v_mfma_f32_32x32x8_bf16 {vr(r,16)}, {vr(vSel0,2)}, {vr(vSel1,2)}, 0')
    for r in range(4): a(f'v_fma_f32 v{vAq+r}, v{vAq+r}, s{sC}, -v{m}')
    zero(vM+16)
    hook(a, 'z0')
    for r in range(4): a(f'v_exp_f32 v{vAq+r}, v{vAq+r}')
    a.wl('sm')
    a(f'v_add_f32 v{sm}, v{sm}, v{sm+1}\nv_add_f32 v{sm+2}, v{sm+2}, v{sm+3}')
    a(f'v_cvt_pk_bf16_f32 v{P0}, v{vAq}, v{vAq+1}\nv_cvt_pk_bf16_f32 v{P0+1}, v{vAq+2}, v{vAq+3}')
    a(f'v_add_f32 v{sm}, v{sm}, v{sm+2}\nv_fma_f32 v{sm}, v{sm}, s{sC}, -v{m}')
    def bmask(B, mk):
        for i in range(4):
            a(f'v_and_b32_dpp v{B+i}, v{P0+(i&1)}, v{mk} quad_perm:{"[0,0,2,2]" if i<2 else "[1,1,3,3]"} {dp}')
    s = sums(vAv, vvm)
    a(f'v_mfma_f32_16x16x16_bf16 {vr(Dl,4)}, {vr(One,2)}, {vr(P0,2)}, 0')
    hook(a, 'y1')
    bmask(B0, vmE)
    a(f'v_cmp_lt_f32 vcc, {f32(cfg.get("thr", 60.0))}, v{sm}')
    a(s[0])
    a(f'v_mfma_f32_16x16x32_bf16 {vr(Do,4)}, {vr(V,4)}, {vr(B0,4)}, 0')
    hook(a, 'z1')
    bmask(B1, vmO)
    a(f'v_add_f32_dpp v{Dl}, v{Dl}, v{Dl} quad_perm:[1,0,3,2] {dp}')
    a(s[1])
    a(f'v_mfma_f32_16x16x32_bf16 {vr(Do,4)}, {vr(V+4,4)}, {vr(B1,4)}, {vr(Do,4)}')
    a(f's_cbranch_vccnz {L}MX\n{L}MB:')
    a(f'v_exp_f32 v{sm}, v{sm}')
    a(s[2]); a(s[3])
    a(f'v_mov_b32_dpp v{sm+1}, v{sm} quad_perm:[0,0,2,2] {dp}\nv_mov_b32_dpp v{sm+2}, v{sm} quad_perm:[1,1,3,3] {dp}')
    a(f'v_cvt_pk_bf16_f32 v{sm+1}, v{sm+1}, v{sm+2}')
    a(f'v_and_b32 v{Bm}, v{sm+1}, v{vmE}\nv_and_b32 v{Bm+1}, v{sm+1}, v{vmO}')
    a(s[4]); a(s[5])
    a(f'v_mfma_f32_16x16x16_bf16 {vr(Dl,4)}, {vr(One,2)}, {vr(Bm,2)}, {vr(Dl,4)}')
    if par == 1: a(f's_cmp_eq_u32 s{sN}, 63')
    a(f'v_mfma_f32_16x16x16_bf16 {vr(Do,4)}, {vr(vvm,2)}, {vr(Bm,2)}, {vr(Do,4)}')
    if par == 1: a(f's_cbranch_scc1 {L}TAIL')
    zero(vM)
    hook(a, 'z2')
    a(f's_add_u32 s{sOV}, s{sOV}, 262144\ns_add_u32 s{sOK}, s{sOK}, 262144')
    a(f'v_rcp_f32 v{m}, v{Dl}')
    for r in range(4): a(f'v_mul_f32 v{Do+r}, v{Do+r}, v{m}')
    a(f'v_cvt_pk_bf16_f32 v{P0}, v{Do}, v{Do+1}\nv_cvt_pk_bf16_f32 v{P0+1}, v{Do+2}, v{Do+3}')
    a.ds(f'ds_write_b64 v{vOW}, {vr(P0,2)} offset:{L_O}')
    a.wl(); a('s_barrier')
    OA = vAv
    a.ds(f'ds_read_b128 {vr(OA,4)}, v{vLr} offset:{L_O}', 'o0')
    a.ds(f'ds_read_b128 {vr(OA+4,4)}, v{vLr} offset:{L_O+1024}', 'o1')
    hook(a, 'z3')
    stamp(a, cfg, 3)
    def omf(kc, Q, tau):
        if 'noo' in ABL: return
        if (kc,Q,tau) in O_LDS: p, b = 'v', vSt + 8*(tau & 1)
        else: p, b = opreg[('o',kc,Q,tau)]
        a('v_smfmac_f32_16x16x64_bf16 %s, %s, %s, v%d' % (vr(vM+16*Q+4*tau,4), vr(OA+4*kc,4), vr(b,8,p), vIdx))
    def fin(Q, tau):
        acc = vM+16*Q+4*tau; d = vAq+4*Q+tau
        r = [f'v_add_f32 v{acc}, v{acc}, v{acc+1}', f'v_add_f32 v{acc+2}, v{acc+2}, v{acc+3}', f'v_cvt_pk_bf16_f32 v{d}, v{acc}, v{acc+2}']
        if tau == 0: r.append(f'v_or_b32 v{d}, 1, v{d}' if ph else f'v_and_b32 v{d}, -2, v{d}')
        return r
    seq = [(kc,Q,tp+i) for Q in range(2) for tp in (0,2) for kc in range(2) for i in range(2)]
    fill = {6: fin(0,0)[:2], 7: fin(0,0)[2:], 8: fin(0,1)[:2], 9: fin(0,1)[2:], 10: fin(0,2)[:2], 11: fin(0,2)[2:]+fin(0,3)[:1],
            12: fin(0,3)[1:], 13: ['ST0'], 14: fin(1,0)[:2], 15: fin(1,0)[2:]+fin(1,1)}
    a.wl('o0')
    for i, o in enumerate(seq):
        if i == 2: a.wl('o1')
        if i == 12: a.wl('st')
        omf(*o)
        hook(a, 'o%d' % i)
        for x in fill.get(i, []):
            if x == 'ST0': a.vm(f'buffer_store_dwordx4 {vr(vAq,4)}, v{vPW}, {W}, 0 offen {st}', 'P')
            else: a(x)
    for x in fin(1,2) + fin(1,3): a(x)
    a.vm(f'buffer_store_dwordx4 {vr(vAq+4,4)}, v{vPW}, {W}, s{sP1} offen {st}', 'P')
    stage(a, ('q',0)); stage(a, ('q',1))
    a(f's_add_u32 s{sN}, s{sN}, 1\ns_mov_b32 s{sCnt}, 0\ns_add_u32 s{sOKM}, s{sOKM}, 262144')
    for r in list(range(vAk, 128, 2)) + list(range(vAq, vAk, 2)): a('v_mov_b64 v[%d:%d], 0' % (r, r+1))
    if cfg.get('post_hook'): cfg['post_hook'](a, par, L)
    assert not HOOK
    stamp(a, cfg, 4)
    if 7 in cfg.get('stamps', ()): a('s_waitcnt vmcnt(0)')
    stamp(a, cfg, 7)
    if 'w1' in OPT: a('s_waitcnt vmcnt(0)')
    for i in range(cfg.get('d1', 0)): a('s_nop 7')
    if 'w1h' in OPT: a('s_waitcnt vmcnt(1)')
    G, R, D = vM, vM+8, vM
    a(f'''
    {L}P1:
    buffer_load_dwordx4 {vr(R,4)}, v{vPR}, {W}, 0 offen sc1
    buffer_load_dwordx4 {vr(R+4,4)}, v{vPR}, {W}, 0 offen offset:1024 sc1
    s_add_u32 s{sCnt}, s{sCnt}, 1
    s_cmp_gt_u32 s{sCnt}, {POLLMAX}
    s_cbranch_scc1 KEND
    s_waitcnt vmcnt(1)
    v_mfma_f32_16x16x32_bf16 {vr(D,4)}, {vr(R,4)}, {vr(vDel,4)}, 0
    s_waitcnt vmcnt(0)
    v_mfma_f32_16x16x32_bf16 {vr(D,4)}, {vr(R+4,4)}, {vr(vDel,4)}, {vr(D,4)}
    v_bitop3_b32 v{vqT}, v{R}, v{R+4}, 1 bitop3:{'0x80' if ph else '0xa8'}
    {'v_cmpx_ne_u32' if 'mask' in OPT else 'v_cmp_ne_u32'} vcc, {ph}, v{vqT}
    s_cbranch_vccnz {L}P1
    {'s_mov_b64 exec, -1' if 'mask' in OPT else ''}
    v_add_f32 v{D}, v{D}, v{D+1}
    v_add_f32 v{D+2}, v{D+2}, v{D+3}
    v_add_f32 v{D}, v{D}, v{D+2}
    v_mov_b32_dpp v{D+1}, v{D} quad_perm:[2,3,2,3] {dp}
    v_cvt_pk_bf16_f32 v{D}, v{D}, v{D+1}
    {f'v_or_b32 v{D}, 1, v{D}' if ph else f'v_and_b32 v{D}, -2, v{D}'}
    buffer_store_dword v{D}, v{vMW}, {W}, 0 offen {st}
    v_readlane_b32 s{sRdy}, v{vT}, 0
    v_readlane_b32 s{sFlK}, v{vT}, 1
    s_min_u32 s{sRdy}, s{sRdy}, s{sFlK}
    s_sub_u32 s{sRdy}, s{sRdy}, 2
    v_mov_b32 v{vT}, s{sN}
    ''')
    if 'kd' in OPT:
        for h in range(2): a.ds(f'ds_read_b128 {vr(vK+4*h,4)}, v{vX} offset:{L_K+1024*h}')
    for j in range(1, 4): a(f'v_xor_b32 v{vqT+j}, {j << 11}, v{vX}')
    a.wl()
    if cfg.get('time'): a(f's_add_u32 s72, s72, s{sCnt}')
    a(f's_mov_b32 s{sCnt}, 0')
    stamp(a, cfg, 5)
    if 'w2' in OPT: a('s_waitcnt vmcnt(0)')
    for i in range(cfg.get('d2', 0)): a('s_nop 7')
    t3 = '0x80' if ph else '0xfe'
    if 'dp2' in OPT:
        ld = f'buffer_load_dwordx4 {vr(G,4)}, v{vX}, {W}, s{sOM} offen sc1\nbuffer_load_dwordx4 {vr(G+4,4)}, v{vX}, {W}, s{sOM} offen offset:1024 sc1'
        a(f'''
        {ld}
        s_waitcnt vmcnt(2)
        {ld}
        s_waitcnt vmcnt(3)
        v_bitop3_b32 v{vqT}, v{G}, v{G+1}, v{G+2} bitop3:{t3}
        s_waitcnt vmcnt(2)
        v_bitop3_b32 v{vqT}, v{vqT}, v{G+3}, v{G+4} bitop3:{t3}
        v_bitop3_b32 v{vqT}, v{vqT}, v{G+5}, v{G+6} bitop3:{t3}
        v_bitop3_b32 v{vqT}, v{vqT}, v{G+7}, 1 bitop3:{'0x80' if ph else '0xa8'}
        v_cmp_ne_u32 vcc, {ph}, v{vqT}
        s_cbranch_vccz {L}P2D
        s_branch {L}P2C
        ''')
    a(f'''
    {L}P2:
    buffer_load_dwordx4 {vr(G,4)}, v{vX}, {W}, s{sOM} offen sc1
    buffer_load_dwordx4 {vr(G+4,4)}, v{vX}, {W}, s{sOM} offen offset:1024 sc1
    {L}P2C:
    s_add_u32 s{sCnt}, s{sCnt}, 1
    s_cmp_gt_u32 s{sCnt}, {POLLMAX}
    s_cbranch_scc1 KEND
    s_waitcnt vmcnt(1)
    v_bitop3_b32 v{vqT}, v{G}, v{G+1}, v{G+2} bitop3:{t3}
    s_waitcnt vmcnt(0)
    v_bitop3_b32 v{vqT}, v{vqT}, v{G+3}, v{G+4} bitop3:{t3}
    v_bitop3_b32 v{vqT}, v{vqT}, v{G+5}, v{G+6} bitop3:{t3}
    v_bitop3_b32 v{vqT}, v{vqT}, v{G+7}, 1 bitop3:{'0x80' if ph else '0xa8'}
    {'v_cmpx_ne_u32' if 'mask' in OPT else 'v_cmp_ne_u32'} vcc, {ph}, v{vqT}
    s_cbranch_vccnz {L}P2
    {'s_mov_b64 exec, -1' if 'mask' in OPT else ''}
    {L}P2D:
    ''')
    if cfg.get('time'): a(f's_add_u32 s73, s73, s{sCnt}')
    stamp(a, cfg, 6)
    a.vq = []

def loop(a, st, cfg, L):
    a(f'{L}LOOP:')
    step(a, 0, st, cfg, L+'A')
    step(a, 1, st, cfg, L+'B')
    a(f's_branch {L}LOOP')
    a(f'{L}BTAIL:')
    a(f'''
    s_add_u32 s{sOKM}, s{sOKM}, 262144
    buffer_store_dwordx4 {vr(vkT,4)}, v{vX}, s[4:7], s{sOKM} offen sc1
    buffer_store_dwordx4 {vr(vvm,4)}, v{vX}, s[4:7], s{sOKM} offen offset:1024 sc1
    v_mov_b32 v{vT}, 0xff
    s_waitcnt vmcnt(0)
    s_barrier
    s_mov_b64 exec, s[46:47]
    buffer_store_dword v{vT}, v{vFl}, s[4:7], 0 offen sc1
    s_mov_b64 exec, -1
    s_branch CH_END
    ''')
    for x in 'AB':
        a(f'{L}{x}RS:')
        rdy(a, f'{L}{x}RL')
        a(f's_branch {L}{x}RB')
        m, t, sm = vAq+4, vAq+5, vAk+4
        a(f'''
        {L}{x}MX:
        v_max_f32 v{m}, 0, v{sm}
        v_max_f32_dpp v{m}, v{m}, v{m} quad_perm:[1,0,3,2] row_mask:0xf bank_mask:0xf
        v_mov_b32 v{t}, v{m}
        v_permlane16_swap_b32 v{m}, v{t}
        v_max_f32 v{m}, v{m}, v{t}
        v_mov_b32 v{t}, v{m}
        v_permlane32_swap_b32 v{m}, v{t}
        v_max_f32 v{m}, v{m}, v{t}
        v_sub_f32 v{sm}, v{sm}, v{m}
        v_exp_f32 v{m}, -v{m}
        s_nop 7
        v_mul_f32 v{vAk}, v{vAk}, v{m}
        v_mul_f32 v{vAq}, v{vAq}, v{m}
        v_mul_f32 v{vAq+1}, v{vAq+1}, v{m}
        v_mul_f32 v{vAq+2}, v{vAq+2}, v{m}
        v_mul_f32 v{vAq+3}, v{vAq+3}, v{m}
        s_nop 1
        s_branch {L}{x}MB
        ''')

def chain(a, cfg):
    ABL.clear(); ABL.update(cfg.get('abl', ())); OPT.clear(); OPT.update(cfg.get('opt', ('mask','w1','w2')))
    prologue(a, cfg)
    if cfg.get('time'):
        a(f's_memtime s[{sT0}:{sT0+1}]\ns_waitcnt lgkmcnt(0)\ns_mov_b32 s81, s{sT0}')
        for k in range(10): a('s_mov_b32 s%d, 0' % (64+k))
    a(f's_cmp_eq_u32 s{S_PURE}, 0\ns_cbranch_scc1 CHS_LOOP')
    loop(a, '', cfg, 'CHP_')
    loop(a, 'sc1', cfg, 'CHS_')
    a('CH_END:')
```

```python
from common import *
vL, vFW, vFR, vKF, vTh, vPW, vPR, vHW, vXO, vQ_, vV_, vOW, vTR, vT, vT2 = range(1, 16)
vDel, vMask, vGa, vSb, vCb, vGb, vX2 = 16, 20, 28, 32, 36, 40, 44
vQ, vK, vV = 48, 64, 96
vKm, vVm, vS, vSm, vP, vB0, vB1, vXr = 112, 128, 132, 140, 144, 148, 150, 152
vF, vY = 160, 192
aWo, aW1, aW2 = 0, 128, 192
sX, sOut = 20, 24
sIt, sOQ, sOK, sOV, sOKM, sOX, sC, sCnt, sPY, sPZ, sH2, sT = 36, 37, 38, 39, 40, 41, 42, 43, 44, 45, 46, 47
L_OF, L_ST, L_T, L_TF, L_V = 0, 8192, 16384, 49152, 57344
dp = 'row_mask:0xf bank_mask:0xf'
W = 's[4:7]'

def xprologue(a, cfg):
    a('XR:')
    xt = lambda k: tabs(a, cfg, k) if cfg.get('xt') else None
    xt(6)
    a(f'''
    s_load_dwordx2 s[20:21], s[0:1], 0
    s_load_dwordx4 s[28:31], s[0:1], 80
    s_load_dwordx2 s[24:25], s[0:1], 96
    v_and_b32 v60, 63, v0          ; lane
    v_and_b32 v61, 15, v0          ; c
    v_bfe_u32 v62, v0, 4, 2        ; g
    v_lshlrev_b32 v{vL}, 4, v60
    s_sub_u32 s48, s{S_TEAM}, 4    ; k
    s_lshl_b32 s49, s48, 5
    s_add_u32 s49, s49, s{S_RANK}  ; xi
    s_lshl_b32 s36, s48, 11
    s_lshl_b32 s37, s{S_WAVE}, 7
    s_add_u32 s36, s36, s37
    s_add_u32 s36, s36, {WS_XF}
    v_lshlrev_b32 v63, 2, v60
    v_add_u32 v63, s36, v63
    v_mov_b32 v64, {OOB}
    v_cmp_gt_u32 vcc, 32, v60
    v_cndmask_b32 v{vFR}, v64, v63, vcc
    v_cmp_eq_u32 vcc, s{S_RANK}, v60
    v_cndmask_b32 v{vFW}, v64, v63, vcc
    s_lshl_b32 s36, s49, 2
    s_add_u32 s36, s36, {WS_HF}
    v_mov_b32 v63, s36
    v_cmp_eq_u32 vcc, 0, v0
    v_cndmask_b32 v59, v64, v63, vcc
    v_mov_b32 v63, 0
    ''')
    a.vm(f'buffer_store_dword v63, v59, {W}, 0 offen sc1', 'z')
    for hop in range(3): a.vm(f'buffer_store_dword v63, v{vFW}, {W}, 0 offen offset:{hop*512} sc1', 'z')
    a(f'''
    s_waitcnt lgkmcnt(0)
    s_mov_b32 s22, {2*MB}
    s_mov_b32 s23, 0x00020000
    s_mov_b32 s26, {2*MB}
    s_mov_b32 s27, 0x00020000
    s_mov_b32 s12, s28
    s_mov_b32 s13, s29
    s_mov_b32 s14, 1024
    s_mov_b32 s15, 0x00020000
    s_mov_b32 s32, s30
    s_mov_b32 s33, s31
    s_mov_b32 s34, {512*6144}
    s_mov_b32 s35, 0x00020000
    v_lshrrev_b32 v63, 2, v0
    v_lshlrev_b32 v64, 4, v63
    s_mov_b32 s36, {8*6144}
    v_mul_lo_u32 v63, v63, s36
    v_and_b32 v65, 3, v0
    v_lshl_add_u32 v63, v65, 4, v63
    s_lshl_b32 s36, s49, 6
    s_cmp_lt_u32 s49, 96
    s_cselect_b32 s36, s36, {OOB}
    v_add_u32 v63, s36, v63
    ''')
    a.vm('buffer_load_dwordx4 v[68:71], v64, s[12:15], 0 offen', 'c')
    for q in range(8):
        a(f's_mov_b32 s36, {q*6144}')
        a.vm(f'buffer_load_dwordx4 {vr(72+4*q,4)}, v63, s[32:35], s36 offen', 'wm')
    a(f'''
    s_lshl_b32 s36, s49, 14
    s_lshl_b32 s37, s{S_WAVE}, 8
    s_add_u32 s36, s36, s37
    v_lshlrev_b32 v63, 10, v61
    v_lshl_add_u32 v63, v62, 4, v63
    v_add_u32 v63, s36, v63
    ''')
    for q in range(4): a.vm(f'buffer_load_dwordx4 {vr(112+4*q,4)}, v63, s[20:23], 0 offen offset:{64*q}', 'x')
    xt(7)
    a.wv('c')
    xt(8)
    a(f's_mov_b32 s36, {f32(-LOG2E)}\ns_mov_b32 s37, 0xffff0000')
    for q in range(8):
        a(f'v_lshlrev_b32 v{104+q}, 16, v{68+q//2}' if q % 2 == 0 else f'v_and_b32 v{104+q}, s37, v{68+q//2}')
    for q in range(8): a(f'v_mul_f32 v{128+q}, s36, v{104+q}')
    for q in range(8): a(f'v_exp_f32 v{128+q}, v{128+q}')
    for q in range(8): a(f'v_add_f32 v{128+q}, 1.0, v{128+q}')
    for q in range(8): a(f'v_rcp_f32 v{128+q}, v{128+q}')
    for q in range(8): a(f'v_mul_f32 v{104+q}, v{104+q}, v{128+q}')
    for q in range(4): a(f'v_cvt_pk_bf16_f32 v{68+q}, v{104+2*q}, v{105+2*q}')
    for q in range(8):
        a(f'v_lshlrev_b32 v{104+q}, 16, v{68+q//2}' if q % 2 == 0 else f'v_and_b32 v{104+q}, s37, v{68+q//2}')
    a.wv('wm')
    xt(9)
    for q in range(8):
        for j in range(8):
            s = 72 + 4*q + j//2
            a(f'v_lshlrev_b32 v{136+j}, 16, v{s}' if j % 2 == 0 else f'v_and_b32 v{136+j}, s37, v{s}')
        for j in range(8):
            a(f'v_mul_f32 v{128+j}, v{104+q}, v{136+j}' if q == 0 else f'v_fmac_f32 v{128+j}, v{104+q}, v{136+j}')
    for r in (4, 8):
        for j in range(8): a(f'v_add_f32_dpp v{128+j}, v{128+j}, v{128+j} row_ror:{r} {dp}')
    a(f'''
    v_lshrrev_b32 v63, 4, v0
    v_lshlrev_b32 v63, 7, v63
    v_lshl_add_u32 v63, v61, 5, v63
    v_cmp_gt_u32 vcc, 4, v61
    s_mov_b64 exec, vcc
    ds_write_b128 v63, v[128:131] offset:{L_T}
    ds_write_b128 v63, v[132:135] offset:{L_T+16}
    s_mov_b64 exec, -1
    ''')
    xt(10)
    a.wv()
    for i in range(32):
        s = 112 + i//2
        a(f'v_lshlrev_b32 v{160+i}, 16, v{s}' if i % 2 == 0 else f'v_and_b32 v{160+i}, s37, v{s}')
    a('v_add_f32 v64, v160, v161\nv_mul_f32 v65, v160, v160\nv_mul_f32 v66, v161, v161')
    for i in range(2, 32):
        a(f'v_add_f32 v64, v64, v{160+i}\nv_fmac_f32 v{65+(i&1)}, v{160+i}, v{160+i}')
    a('v_add_f32 v65, v65, v66')
    for p in ('16', '32'):
        a(f'''
        v_mov_b32 v66, v64
        v_mov_b32 v67, v65
        v_permlane{p}_swap_b32 v64, v66
        v_permlane{p}_swap_b32 v65, v67
        v_add_f32 v64, v64, v66
        v_add_f32 v65, v65, v67
        ''')
    a(f'''
    s_lshl_b32 s36, s{S_WAVE}, 3
    v_lshlrev_b32 v63, 5, v61
    v_add_u32 v66, s36, v63
    ds_write_b64 v66, v[64:65] offset:{L_ST}
    s_waitcnt lgkmcnt(0)
    s_barrier
    ds_read_b128 v[64:67], v63 offset:{L_ST}
    ds_read_b128 v[68:71], v63 offset:{L_ST+16}
    s_cmp_lg_u32 s{S_WAVE}, 0
    s_cbranch_scc1 XR_M1
    v_and_b32 v72, 31, v60
    v_lshrrev_b32 v73, 5, v60
    v_lshlrev_b32 v72, 2, v72
    v_lshl_add_u32 v73, v73, 10, v72
    ''')
    xt(11)
    for r in range(8): a(f'ds_read_b32 v{80+r}, v73 offset:{L_T + r*128}')
    a('s_waitcnt lgkmcnt(0)')
    for r in range(1, 8): a(f'v_add_f32 v80, v80, v{80+r}')
    a(f'''
    v_mov_b32 v81, v80
    v_permlane32_swap_b32 v80, v81
    v_add_f32 v80, v80, v81
    v_cvt_pk_bf16_f32 v80, v80, v80
    v_lshlrev_b32 v80, 16, v80
    s_lshl_b32 s36, s49, 7
    s_add_u32 s36, s36, {WS_MOD}
    s_cmp_lt_u32 s49, 96
    s_cselect_b32 s36, s36, {OOB}
    v_add_u32 v72, s36, v72
    s_mov_b32 exec_hi, 0
    buffer_store_dword v80, v72, {W}, 0 offen sc1
    s_mov_b64 exec, -1
    s_waitcnt vmcnt(0)
    XR_M1:
    ''')
    xt(12)
    arrive(a, 72, 73, 'XR_AR')
    tabs(a, cfg, 0)
    a(f'''
    s_waitcnt lgkmcnt(0)
    v_add_f32 v64, v64, v66
    v_add_f32 v68, v68, v70
    v_add_f32 v65, v65, v67
    v_add_f32 v69, v69, v71
    v_add_f32 v64, v64, v68
    v_add_f32 v65, v65, v69
    v_mul_f32 v64, {f32(1/512)}, v64
    v_mul_f32 v65, {f32(1/512)}, v65
    v_fma_f32 v65, -v64, v64, v65
    v_max_f32 v65, 0, v65
    v_add_f32 v65, {f32(1e-5)}, v65
    v_rsq_f32 v65, v65
    ''')
    for i in range(32): a(f'v_sub_f32 v{160+i}, v{160+i}, v64')
    for i in range(32): a(f'v_mul_f32 v{160+i}, v{160+i}, v65')
    dbgpoll_wg(a, 72, 73, 'XR_BP', L_V, mask=1)
    tabs(a, cfg, 1)
    a(f'''
    s_lshl_b32 s36, s{S_WAVE}, 9
    s_add_u32 s36, s36, {WS_MOD}
    v_lshlrev_b32 v63, 5, v62
    v_add_u32 v63, s36, v63
    v_and_b32 v64, 1, v62
    v_lshlrev_b32 v64, 4, v64
    v_lshl_add_u32 v64, v61, 5, v64
    v_add_u32 v58, s36, v64
    ''')
    for q in range(4):
        for hh in range(2):
            a.vm(f'buffer_load_dwordx4 {vr(192+8*q+4*hh,4)}, v63, {W}, 0 offen offset:{128*q+16*hh} sc1', 'm%d' % q)
            a.vm(f'buffer_load_dwordx4 {vr(224+8*q+4*hh,4)}, v63, {W}, 0 offen offset:{2048+128*q+16*hh} sc1', 'm%d' % q)
    a(f'''
    s_lshr_b32 s36, s49, 1
    s_lshl_b32 s36, s36, 15
    s_and_b32 s37, s49, 1
    s_lshl_b32 s37, s37, 10
    s_add_u32 s36, s36, s37
    s_lshl_b32 s37, s{S_WAVE}, 13
    s_add_u32 s36, s36, s37
    v_add_u32 v63, s36, v{vL}
    s_movk_i32 s36, 0x1000
    ''')
    for q in range(4):
        a.wv('m%d' % q)
        for j in range(8):
            i = 8*q + j
            a(f'v_add_f32 v{224+i}, 1.0, v{224+i}\nv_fma_f32 v{160+i}, v{160+i}, v{224+i}, v{192+i}')
        for j in range(4): a(f'v_cvt_pk_bf16_f32 v{112+4*q+j}, v{160+8*q+2*j}, v{161+8*q+2*j}')
        a.vm(f'buffer_store_dwordx4 {vr(112+4*q,4)}, v63, {W}, {"s36" if q >= 2 else 0} offen offset:{(q&1)*2048} sc1')
    a('s_load_dwordx2 s[12:13], s[0:1], 40\ns_load_dwordx4 s[28:31], s[0:1], 64')
    a.wv(); a('s_barrier')
    a(f'v_mov_b32 v72, 1\nbuffer_store_dword v72, v59, {W}, 0 offen sc1')
    tabs(a, cfg, 2)
    a(f'''
    s_waitcnt lgkmcnt(0)
    s_mov_b32 s14, 0x400000
    s_mov_b32 s32, s30
    s_mov_b32 s33, s31
    s_mov_b32 s34, {1376*1024}
    s_mov_b32 s30, {1376*1024}
    s_mov_b32 s31, 0x00020000
    s_lshl_b32 s36, s{S_WAVE}, 8
    v_lshlrev_b32 v63, 4, v61
    v_add_u32 v63, s36, v63            ; 256w + 16c
    s_lshl_b32 s36, s{S_RANK}, 17
    v_lshl_add_u32 v64, v62, 12, v63
    v_add_u32 v64, s36, v64            ; Wo
    s_lshl_b32 s36, s{S_RANK}, 16
    v_lshl_add_u32 v65, v62, 14, v63
    v_add_u32 v65, s36, v65            ; w2
    s_mul_i32 s36, s{S_WAVE}, {128*2752}
    s_lshl_b32 s37, s{S_RANK}, 7
    v_lshl_add_u32 v66, v61, 3, s37    ; 128 rank + 8c
    v_cmp_gt_u32 vcc, 2752, v66
    v_mul_u32_u24 v67, {8*2752}, v62
    v_add3_u32 v66, v66, v67, s36
    v_mov_b32 v67, {OOB}
    v_cndmask_b32 v66, v67, v66, vcc   ; w1
    s_mov_b32 s50, 0x05040100
    s_mov_b32 s51, 0x07060302
    ''')
    R = 128
    for ks in range(4):
        for j in range(8):
            if j % 4 == 0: a(f's_mov_b32 s36, {(32*ks + 16*(j>>2))*1024}')
            a.vm(f'buffer_load_dwordx4 {vr(R+32*ks+4*j,4)}, v64, s[12:15], s36 offen offset:{(j&3)*1024}', 'wo%d' % ks)
    def perm(dst, lo, hi, half, k):
        t = 68 + (k & 7)
        a(f'v_perm_b32 v{t}, v{hi}, v{lo}, s{50+half}\nv_accvgpr_write_b32 a{dst}, v{t}')
    for ks in range(4):
        a.wv('wo%d' % ks)
        for T in range(8):
            for q in range(4): perm(aWo + (ks*8+T)*4 + q, R+32*ks+8*q+(T>>1), R+32*ks+8*q+4+(T>>1), T & 1, q)
    for ks in range(4):
        for j in range(8):
            a(f's_mov_b32 s36, {(32*ks + j)*2752}')
            a.vm(f'buffer_load_dwordx2 {vr(R+16*ks+2*j,2)}, v66, s[28:31], s36 offen', 'w1')
    for r in range(16):
        if r % 4 == 0: a(f's_mov_b32 s36, {(r>>2)*4096}')
        a.vm(f'buffer_load_dwordx4 {vr(R+64+4*r,4)}, v65, s[32:35], s36 offen offset:{(r&3)*1024}', 'w2')
    a(f'''
    v_lshrrev_b32 v64, 2, v60
    v_and_b32 v65, 3, v60
    v_cmp_lt_u32 vcc, 3, v60
    v_cndmask_b32 v65, 0, v65, vcc
    v_lshlrev_b32 v65, 2, v65
    v_lshl_add_u32 v65, v64, 12, v65
    s_lshl_b32 s36, s{S_RANK}, 7
    s_add_u32 s36, s36, {WS_FL}
    v_add_u32 v65, s36, v65
    v_mov_b32 v67, {OOB}
    v_cmp_gt_u32 vcc, 16, v60
    v_cndmask_b32 v{vKF}, v67, v65, vcc
    s_lshl_b32 s36, s{S_WAVE}, 13
    s_lshl_b32 s37, s{S_RANK}, 8
    s_add_u32 s37, s36, s37
    v_lshlrev_b32 v64, 17, v62
    v_lshl_add_u32 v64, v61, 4, v64
    v_add_u32 v{vPW}, s37, v64
    s_lshl_b32 s37, s{S_RANK}, 15
    s_add_u32 s37, s36, s37
    v_add_u32 v{vPR}, s37, v{vL}
    v_add_u32 v{vTR}, s36, v{vL}       ; w*8192 + lane*16
    v_lshrrev_b32 v64, 2, v61
    v_lshlrev_b32 v64, 11, v64
    v_and_b32 v65, 3, v61
    v_lshl_add_u32 v64, v65, 8, v64
    v_lshl_add_u32 v64, v62, 3, v64
    s_lshr_b32 s37, s{S_RANK}, 4
    s_lshl_b32 s37, s37, 10
    s_add_u32 s36, s36, s37
    s_and_b32 s37, s{S_RANK}, 15
    s_lshl_b32 s37, s37, 4
    s_add_u32 s36, s36, s37
    v_add_u32 v64, s36, v64
    v_cmp_gt_u32 vcc, 32, v60
    v_cndmask_b32 v{vHW}, v67, v64, vcc
    v_and_b32 v64, 1, v62
    v_lshl_add_u32 v64, v64, 3, v63
    s_lshl_b32 s36, s{S_RANK}, 10
    v_add_u32 v{vXO}, s36, v64
    s_and_b32 s36, s{S_WAVE}, 1
    s_lshr_b32 s37, s{S_WAVE}, 1
    s_lshl_b32 s38, s36, 10
    v_add_u32 v{vQ_}, s38, v{vL}
    s_lshl_b32 s38, s37, 12
    v_add_u32 v{vV_}, s38, v{vL}
    s_lshl_b32 s38, s36, 12
    s_lshl_b32 s39, s37, 11
    s_add_u32 s38, s38, s39
    v_add_u32 v{vOW}, s38, v{vL}
    v_and_b32 v64, 1, v61
    v_lshlrev_b32 v64, 4, v64
    v_mov_b32 v65, 0x3f80
    v_lshlrev_b32 v64, v64, v65
    v_bfe_u32 v65, v61, 1, 2
    ''')
    for i in range(4): a(f'v_cmp_eq_u32 vcc, {i}, v65\nv_cndmask_b32 v{vDel+i}, 0, v64, vcc')
    a(f'''
    s_lshl_b32 s36, s36, 4
    v_lshlrev_b32 v64, 2, v62
    v_sub_u32 v64, v61, v64
    v_add_u32 v64, s36, v64
    v_mov_b32 v65, {f32(-1e30)}
    ''')
    for U in range(2):
        for i in range(4): a(f'v_cmp_gt_i32 vcc, {16*U+i}, v64\nv_cndmask_b32 v{vMask+4*U+i}, 0, v65, vcc')
    a(f'''
    s_add_u32 s36, s48, 1
    v_mov_b32 v64, s36
    v_cmp_lt_u32 vcc, 3, v60
    v_cndmask_b32 v{vTh}, 0, v64, vcc
    s_lshl_b32 s36, s48, 18
    s_lshl_b32 s37, s{S_RANK}, 13
    s_add_u32 s36, s36, s37
    s_add_u32 s{sOKM}, s36, {WS_KM}
    s_add_u32 s{sOV}, s36, {WS_VC}
    s_add_u32 s{sOK}, s36, {WS_KC}
    s_add_u32 s{sOQ}, s36, {WS_QC}
    s_lshl_b32 s{sOX}, s48, 15
    s_add_u32 s{sH2}, s{sOX}, {WS_H2}
    s_lshl_b32 s{sPY}, s48, 21
    s_add_u32 s{sPY}, s{sPY}, {WS_PY}
    s_add_u32 s{sPZ}, s{sPY}, {MB}
    s_mov_b32 s{sC}, {f32(128**-0.5*LOG2E)}
    s_mov_b32 s{sIt}, 0
    ''')
    a.wv('w1')
    for ks in range(4):
        for T in range(4):
            for q in range(4): perm(aW1 + (ks*4+T)*4 + q, R+16*ks+4*q+(T>>1), R+16*ks+4*q+2+(T>>1), T & 1, q)
    a.wv('w2')
    for s in range(2):
        for T in range(8):
            for q in range(4):
                rows = [4*(jj&3) + 2*s + (jj>>2) for jj in (2*q, 2*q+1)]
                perm(aW2 + (s*8+T)*4 + q, R+64+4*rows[0]+(T>>1), R+64+4*rows[1]+(T>>1), T & 1, q)
    a(f'v_mov_b32 v{vB0+1}, 0\nv_mov_b32 v{vB1}, 0')
    dbgpoll_wg(a, 72, 73, 'XR_BQ', L_V)
    a('s_movk_i32 s97, 0x1000\ns_movk_i32 s98, 0x2000')
    a.vm(f'buffer_load_dwordx4 {vr(vGa,4)}, v58, {W}, s97 offen sc1')
    a.vm(f'buffer_load_dwordx4 {vr(vSb,4)}, v58, {W}, s97 offen offset:2048 sc1')
    a.vm(f'buffer_load_dwordx4 {vr(vCb,4)}, v58, {W}, s98 offen sc1')
    a.vm(f'buffer_load_dwordx4 {vr(vGb,4)}, v58, {W}, s98 offen offset:2048 sc1')
    a.wv()
    for i in range(4): a(f'v_add_f32 v{vCb+i}, 1.0, v{vCb+i}')
    tabs(a, cfg, 3)
    if cfg.get('time') and not cfg.get('xt'):
        for k in range(6, 16): a(f's_mov_b32 s{64+k}, 0')
    kpoll(a, 'XR_K0')
    qkvload(a)
    a(f'''
    s_add_u32 s{sT}, s48, 2
    v_mov_b32 v{vT}, s{sT}
    v_add_u32 v{vTh}, 4, v{vTh}
    v_cmp_gt_u32 vcc, 64, v{vL}
    v_cndmask_b32 v{vTh}, v{vTh}, v{vT}, vcc
    ''')

KS = [8]
def kpoll(a, L):
    a(f'''
    s_mov_b32 s{sCnt}, 0
    s_mov_b64 exec, 0xffff
    s_branch {L}E
    {L}:
    s_sleep {KS[0]}
    {L}E:
    buffer_load_dword v{vT}, v{vKF}, {W}, 0 offen sc1
    s_add_u32 s{sCnt}, s{sCnt}, 1
    s_cmp_gt_u32 s{sCnt}, {POLLMAX}
    s_cbranch_scc1 KEND
    s_waitcnt vmcnt(0)
    v_cmpx_lt_u32 vcc, v{vT}, v{vTh}
    s_cbranch_vccnz {L}
    s_mov_b64 exec, -1
    ''')
    a.vq = []
def hpoll(a, L, hop, n):
    a(f'''
    s_mov_b32 s{sCnt}, 0
    {'s_mov_b32 exec_hi, 0' if n == 32 else 's_mov_b64 exec, ' + hex((1 << n) - 1)}
    {L}:
    buffer_load_dword v{vT}, v{vFR}, {W}, 0 offen offset:{hop*512} sc1
    s_add_u32 s{sCnt}, s{sCnt}, 1
    s_cmp_gt_u32 s{sCnt}, {POLLMAX}
    s_cbranch_scc1 KEND
    s_waitcnt vmcnt(0)
    v_cmp_gt_u32 vcc, s{sIt}, v{vT}
    s_cbranch_vccnz {L}
    s_mov_b64 exec, -1
    ''')
    a.vq = []
def hflag(a, hop, st):
    a(f'v_mov_b32 v{vT2}, s{sIt}')
    a.wv()
    a.vm(f'buffer_store_dword v{vT2}, v{vFW}, {W}, 0 offen offset:{hop*512} {st}')
def qkvload(a):
    for hh in range(2):
        if hh: a(f's_add_u32 s{sT}, s{sOQ}, 4096')
        for k in range(2): a.vm(f'buffer_load_dwordx4 {vr(vQ+8*hh+4*k,4)}, v{vQ_}, {W}, s{sT if hh else sOQ} offen offset:{2048*k} sc1', 'q')
    for hh in range(2):
        if hh: a(f's_add_u32 s{sT}, s{sOK}, 4096')
        for k in range(4): a.vm(f'buffer_load_dwordx4 {vr(vK+16*hh+4*k,4)}, v{vL}, {W}, s{sT if hh else sOK} offen offset:{1024*k} sc1', 'q')
    for k in range(4): a.vm(f'buffer_load_dwordx4 {vr(vV+4*k,4)}, v{vV_}, {W}, s{sOV} offen offset:{1024*k} sc1', 'q')
    for s in (sOQ, sOK, sOV): a(f's_add_u32 s{s}, s{s}, {MB}')

def mm(d, A, B, c, k=32): return f'v_mfma_f32_16x16x{k}_bf16 {d}, {A}, {B}, {c}'
def proj(a, aW, nk, sP, st):
    for U in range(2):
        for ks in range(nk):
            a.wl('F%d' % (U*nk+ks))
            for T in range(8):
                d = vr(vY+32*U+4*T,4)
                a(mm(d, vr(vF+(U*nk+ks)*4,4), vr(aW+(ks*8+T)*4,4,'a'), d if ks else 0))
                if U == 1 and (ks*8+T) >= 4 and (ks*8+T) < 12:
                    i = (ks*8+T-4) >> 1; hq = (ks*8+T-4) & 1
                    for q in (2*hq, 2*hq+1): a(f'v_cvt_pk_bf16_f32 v{vKm+4*i+q}, v{vY+8*q+i}, v{vY+8*q+4+i}')
                    if hq:
                        a(f's_add_u32 s{sT}, s{sP}, {i*32768}')
                        a.vm(f'buffer_store_dwordx4 {vr(vKm+4*i,4)}, v{vPW}, {W}, s{sT} offen {st}')
    for i in range(4):
        for q in range(4): a(f'v_cvt_pk_bf16_f32 v{vY+4*i+q}, v{vY+32+8*q+i}, v{vY+32+8*q+4+i}')
        a(f's_add_u32 s{sT}, s{sP}, {(16+i)*32768}')
        a.vm(f'buffer_store_dwordx4 {vr(vY+4*i,4)}, v{vPW}, {W}, s{sT} offen {st}')
def reduce(a, sP, nq):
    a(f's_add_u32 s{sT}, s{sP}, 4096')
    for q in range(nq): a.vm(f'buffer_load_dwordx4 {vr(vF+4*q,4)}, v{vPR}, {W}, s{sP if q < 4 else sT} offen offset:{(q&3)*1024} sc1', 'r%d' % q)
    for q in range(nq):
        a.wv('r%d' % q)
        d = vr(vS+4*(q&1),4)
        a(mm(d, vr(vDel,4), vr(vF+4*q,4), d if q >= 2 else 0))
    for i in range(4): a(f'v_add_f32 v{vS+i}, v{vS+i}, v{vS+4+i}')

def xloop(a, st, L, cfg):
    a(f'{L}LOOP:')
    a.vq = []; a.dq = []
    a(f's_add_u32 s{sIt}, s{sIt}, 1\ns_waitcnt vmcnt(0)')
    for ks in range(4):
        for U in range(2):
            d = vr(vS+4*U,4)
            a(mm(d, vr(vK+8*ks+4*U,4), vr(vQ+4*ks,4), d if ks else vr(vMask+4*U,4)))
    tacc(a, cfg, 6)
    kpoll(a, L+'K')
    tabs(a, cfg, 4)
    a(f's_add_u32 s{sT}, s{sOKM}, 4096')
    for ks in range(4): a.vm(f'buffer_load_dwordx4 {vr(vKm+4*ks,4)}, v{vL}, {W}, s{sOKM if ks < 2 else sT} offen offset:{(ks&1)*2048} sc1', 'k%d' % ks)
    for k in range(2): a.vm(f'buffer_load_dwordx2 {vr(vVm+2*k,2)}, v{vV_}, {W}, s{sOKM} offen offset:{1024+2048*k} sc1', 'vm')
    a.vm(f'buffer_load_dwordx2 {vr(vXr,2)}, v{vXO}, s[{sX}:{sX+3}], s{sOX} offen', 'x')
    m, t = vT, vT2
    a(f'''
    s_add_u32 s{sOKM}, s{sOKM}, {MB}
    v_add_u32 v{vTh}, 4, v{vTh}
    v_max3_f32 v{m}, v{vS}, v{vS+1}, v{vS+2}
    v_max3_f32 v{t}, v{vS+3}, v{vS+4}, v{vS+5}
    v_max3_f32 v{m}, v{m}, v{vS+6}, v{vS+7}
    v_max_f32 v{m}, v{m}, v{t}
    ''')
    for ks in range(4):
        a.wv('k%d' % ks)
        a(mm(vr(vSm,4), vr(vKm+4*ks,4), vr(vQ+4*ks,4), vr(vSm,4) if ks else 0))
    a(f'v_max3_f32 v{m}, v{m}, v{vSm}, v{vSm+2}')
    for p in ('16', '32'):
        a(f'v_mov_b32 v{t}, v{m}\nv_permlane{p}_swap_b32 v{m}, v{t}\nv_max_f32 v{m}, v{m}, v{t}')
    a(f'v_mul_f32 v{m}, s{sC}, v{m}')
    E = [vS+i for i in range(8)] + [vSm, vSm+2]
    for e in E: a(f'v_fma_f32 v{e}, v{e}, s{sC}, -v{m}')
    for e in E: a(f'v_exp_f32 v{e}, v{e}')
    for i in range(4): a(f'v_cvt_pk_bf16_f32 v{vP+i}, v{vS+2*i}, v{vS+2*i+1}')
    a(f'v_cvt_pk_bf16_f32 v{vB0}, v{vSm}, v{vSm+2}\nv_mov_b32 v{vB1+1}, v{vB0}')
    O = vY
    for k in range(4): a(mm(vr(O+4*k,4), vr(vV+4*k,4), vr(vP,4), 0))
    a.wv('vm')
    for k in range(4): a(mm(vr(O+4*k,4), vr(vVm+2*(k>>1),2), vr(vB1 if k & 1 else vB0,2), vr(O+4*k,4), 16))
    a(f'v_add_f32 v{m}, v{vS}, v{vS+1}\nv_add_f32 v{t}, v{vS+2}, v{vS+3}')
    for e in E[4:7]: a(f'v_add_f32 v{m}, v{m}, v{e}')
    for e in E[7:]: a(f'v_add_f32 v{t}, v{t}, v{e}')
    a(f'v_add_f32 v{m}, v{m}, v{t}')
    for p in ('16', '32'):
        a(f'v_mov_b32 v{t}, v{m}\nv_permlane{p}_swap_b32 v{m}, v{t}\nv_add_f32 v{m}, v{m}, v{t}')
    a(f'v_rcp_f32 v{m}, v{m}')
    for i in range(16): a(f'v_mul_f32 v{O+i}, v{O+i}, v{m}')
    for i in range(8): a(f'v_cvt_pk_bf16_f32 v{O+16+i}, v{O+2*i}, v{O+2*i+1}')
    a.ds(f'ds_write_b128 v{vOW}, {vr(O+16,4)} offset:{L_OF}')
    a.ds(f'ds_write_b128 v{vOW}, {vr(O+20,4)} offset:{L_OF+1024}')
    a.wl(); a('s_barrier')
    for f in range(8): a.ds(f'ds_read_b128 {vr(vF+4*f,4)}, v{vL} offset:{L_OF+f*1024}', 'F%d' % f)
    tacc(a, cfg, 7)
    qkvload(a)
    proj(a, aWo, 4, sPY, st)
    tacc(a, cfg, 8)
    hflag(a, 0, st)
    tacc(a, cfg, 9)
    a(f'''
    v_lshlrev_b32 v{vX2}, 16, v{vXr}
    v_and_b32 v{vX2+1}, 0xffff0000, v{vXr}
    v_lshlrev_b32 v{vX2+2}, 16, v{vXr+1}
    v_and_b32 v{vX2+3}, 0xffff0000, v{vXr+1}
    ''')
    hpoll(a, L+'A', 0, 32)
    tacc(a, cfg, 10)
    reduce(a, sPY, 8)
    for i in range(4): a(f'v_fmac_f32 v{vX2+i}, v{vGa+i}, v{vS+i}')
    s1, s2 = vS, vS+1
    a(f'''
    v_add_f32 v{s1}, v{vX2}, v{vX2+1}
    v_mul_f32 v{s2}, v{vX2}, v{vX2}
    v_add_f32 v{s1}, v{s1}, v{vX2+2}
    v_fmac_f32 v{s2}, v{vX2+1}, v{vX2+1}
    v_add_f32 v{s1}, v{s1}, v{vX2+3}
    v_fmac_f32 v{s2}, v{vX2+2}, v{vX2+2}
    v_fmac_f32 v{s2}, v{vX2+3}, v{vX2+3}
    ''')
    for r in (8, 4, 2, 1):
        a(f'v_add_f32_dpp v{s1}, v{s1}, v{s1} row_ror:{r} {dp}\nv_add_f32_dpp v{s2}, v{s2}, v{s2} row_ror:{r} {dp}')
    a(f'''
    v_lshrrev_b32 v{t}, 4, v0
    v_lshlrev_b32 v{t}, 3, v{t}
    v_mov_b32 v{m}, 0
    ''')
    a.ds(f'ds_write_b64 v{t}, {vr(s1,2)} offset:{L_ST}')
    a.wl(); a('s_barrier')
    for w in range(4): a.ds(f'ds_read_b128 {vr(vF+4*w,4)}, v{m} offset:{L_ST+32*w}')
    a.wl()
    for k in range(2):
        a(f'''
        v_add_f32 v{vF+k}, v{vF+k}, v{vF+2+k}
        v_add_f32 v{vF+4+k}, v{vF+4+k}, v{vF+6+k}
        v_add_f32 v{vF+8+k}, v{vF+8+k}, v{vF+10+k}
        v_add_f32 v{vF+12+k}, v{vF+12+k}, v{vF+14+k}
        ''')
    for k in range(2): a(f'v_add_f32 v{vF+k}, v{vF+k}, v{vF+4+k}\nv_add_f32 v{vF+8+k}, v{vF+8+k}, v{vF+12+k}')
    a(f'''
    v_add_f32 v{s1}, v{vF}, v{vF+8}
    v_add_f32 v{s2}, v{vF+1}, v{vF+9}
    v_mul_f32 v{s1}, {f32(1/512)}, v{s1}
    v_mul_f32 v{s2}, {f32(1/512)}, v{s2}
    v_fma_f32 v{s2}, -v{s1}, v{s1}, v{s2}
    v_max_f32 v{s2}, 0, v{s2}
    v_add_f32 v{s2}, {f32(1e-5)}, v{s2}
    v_rsq_f32 v{s2}, v{s2}
    ''')
    for i in range(4): a(f'v_sub_f32 v{vS+4+i}, v{vX2+i}, v{s1}')
    for i in range(4): a(f'v_mul_f32 v{vS+4+i}, v{vS+4+i}, v{s2}')
    for i in range(4): a(f'v_fma_f32 v{vS+4+i}, v{vS+4+i}, v{vCb+i}, v{vSb+i}')
    a(f'v_cvt_pk_bf16_f32 v{vS}, v{vS+4}, v{vS+5}\nv_cvt_pk_bf16_f32 v{vS+1}, v{vS+6}, v{vS+7}')
    a.vm(f'buffer_store_dwordx2 {vr(vS,2)}, v{vHW}, {W}, s{sH2} offen {st}')
    hflag(a, 1, st)
    tacc(a, cfg, 11)
    a(f's_cmp_ge_u32 s{S_RANK}, 24\ns_cbranch_scc1 {L}NOF')
    hpoll(a, L+'B', 1, 32)
    tacc(a, cfg, 12)
    a(f's_add_u32 s{sT}, s{sH2}, 4096')
    for f in range(8): a.vm(f'buffer_load_dwordx4 {vr(vF+4*f,4)}, v{vTR}, {W}, s{sH2 if f < 4 else sT} offen offset:{(f&3)*1024} sc1', 'h%d' % f)
    for ks in range(4):
        for U in range(2):
            a.wv('h%d' % (2*ks+U))
            for T in range(4):
                d = vr(vY+16*U+4*T,4)
                a(mm(d, vr(aW1+(ks*4+T)*4,4,'a'), vr(vF+(2*ks+U)*4,4), d if ks else 0))
    for f in range(8): a.ds(f'ds_write_b128 v{vTR}, {vr(vY+4*f,4)} offset:{L_T+f*1024}')
    a.wl(); a('s_barrier')
    for w in range(4):
        for k in range(2): a.ds(f'ds_read_b128 {vr(vF+8*w+4*k,4)}, v{vOW} offset:{L_T+w*8192+k*1024}', 't%d' % w)
    a(f's_mov_b32 s{sT}, {f32(-LOG2E)}')
    a.wl('t1')
    for i in range(8): a(f'v_add_f32 v{vF+i}, v{vF+i}, v{vF+8+i}')
    a.wl('t3')
    for i in range(8): a(f'v_add_f32 v{vF+16+i}, v{vF+16+i}, v{vF+24+i}')
    for i in range(8): a(f'v_add_f32 v{vF+i}, v{vF+i}, v{vF+16+i}')
    for i in range(8): a(f'v_mul_f32 v{vF+8+i}, s{sT}, v{vF+i}')
    for i in range(8): a(f'v_exp_f32 v{vF+8+i}, v{vF+8+i}')
    for i in range(8): a(f'v_add_f32 v{vF+8+i}, 1.0, v{vF+8+i}')
    for i in range(8): a(f'v_rcp_f32 v{vF+8+i}, v{vF+8+i}')
    for i in range(8): a(f'v_mul_f32 v{vF+i}, v{vF+i}, v{vF+8+i}')
    for i in range(4): a(f'v_cvt_pk_bf16_f32 v{vF+16+i}, v{vF+2*i}, v{vF+2*i+1}')
    a.ds(f'ds_write_b128 v{vOW}, {vr(vF+16,4)} offset:{L_TF}')
    a.wl(); a('s_barrier')
    for f in range(4): a.ds(f'ds_read_b128 {vr(vF+4*f,4)}, v{vL} offset:{L_TF+f*2048}', 'F%d' % f)
    proj(a, aW2, 2, sPZ, st)
    hflag(a, 2, st)
    tacc(a, cfg, 13)
    a(f'{L}NOF:')
    hpoll(a, L+'C', 2, 24)
    reduce(a, sPZ, 6)
    for i in range(4): a(f'v_fmac_f32 v{vX2+i}, v{vGb+i}, v{vS+i}')
    a(f'''
    v_cvt_pk_bf16_f32 v{vS}, v{vX2}, v{vX2+1}
    v_cvt_pk_bf16_f32 v{vS+1}, v{vX2+2}, v{vX2+3}
    s_mov_b32 exec_hi, 0
    buffer_store_dwordx2 {vr(vS,2)}, v{vXO}, s[{sOut}:{sOut+3}], s{sOX} offen
    s_mov_b64 exec, -1
    s_add_u32 s{sOX}, s{sOX}, 0x20000
    s_cmp_lt_u32 s{sIt}, 16
    s_cbranch_scc1 {L}LOOP
    ''')
    tabs(a, cfg, 5); tdump(a, cfg)
    a('s_branch KEND')

def xrole(a, cfg):
    KS[0] = cfg.get('ks', 8)
    xprologue(a, cfg)
    a(f's_cmp_eq_u32 s{S_PURE}, 0\ns_cbranch_scc1 XS_LOOP')
    xloop(a, '', 'XP_', cfg)
    xloop(a, 'sc1', 'XS_', cfg)
```
